```python
import torch

def _softmax(x, axis=-1):
    return torch.softmax(x, dim=axis)
def _gelu(x):
    return torch.nn.functional.gelu(x, approximate="tanh")
def _silu(x):
    return torch.nn.functional.silu(x)
def _sigmoid(x):
    return torch.sigmoid(x)
def _layernorm(x, axis=-1, eps=1e-5):
    m = x.mean(dim=axis, keepdim=True)
    v = x.var(dim=axis, keepdim=True, unbiased=False)
    return (x - m) / torch.sqrt(v + eps)
def _scatter_add(tgt, idx, src, axis=0):
    return tgt.clone().index_add_(axis, idx, src)
def _segment_sum(src, seg, n):
    out = torch.zeros((n,) + src.shape[1:], dtype=src.dtype)
    return out.index_add_(0, seg, src)
def _pad(x, pw):
    flat = tuple(v for pair in reversed(pw) for v in pair)
    return torch.nn.functional.pad(x, flat)

kernel_name = 'gated_mix__ssm_conv_s4d__geglu_ffn__prompt'

def setup_inputs():

    _w = (lambda a: (lambda t: t.to(torch.bfloat16) if t.is_floating_point() else t)(torch.as_tensor(a)))
    def _A_setup():
        Bsz, L, D, N = 1, 2048, 576, 128
        return {
            "u": _w((lambda *s: torch.randn(*s, dtype=torch.bfloat16) * 0.05)(Bsz, L, D)),
            "log_A_real": _w((lambda *s: torch.randn(*s, dtype=torch.bfloat16) * 6.4)(D, N) * 0.5),
            "A_imag": _w((lambda *s: torch.randn(*s, dtype=torch.bfloat16) * 0.05)(D, N) * 3.14),
            "C_real": _w((lambda *s: torch.randn(*s, dtype=torch.bfloat16) * 0.05)(D, N) / N ** 0.5),
            "C_imag": _w((lambda *s: torch.randn(*s, dtype=torch.bfloat16) * 0.05)(D, N) / N ** 0.5),
            "log_dt": _w((lambda *s: torch.randn(*s, dtype=torch.bfloat16) * 0.05)(D) * 0.5 - 4.0),
            "D_skip": _w((lambda *s: torch.randn(*s, dtype=torch.bfloat16) * 0.05)(D)),
        }
    _A_in = _A_setup()

    def _B_setup():
        B, S, D, F = 1, 2048, 576, 4608
        return {
            "x": _w((lambda *s: torch.randn(*s, dtype=torch.bfloat16) * 0.05)(B, S, D)),
            "w_gate": _w((lambda *s: torch.randn(*s, dtype=torch.bfloat16) * 0.05)(D, F)),
            "w_up": _w((lambda *s: torch.randn(*s, dtype=torch.bfloat16) * 0.05)(D, F)),
            "w_down": _w((lambda *s: torch.randn(*s, dtype=torch.bfloat16) * 0.05)(F, D)),
        }
    _B_in = _B_setup()

    return {
        "A_u": _A_in["u"],
        "A_log_A_real": _A_in["log_A_real"],
        "A_A_imag": _A_in["A_imag"],
        "A_C_real": _A_in["C_real"],
        "A_C_imag": _A_in["C_imag"],
        "A_log_dt": _A_in["log_dt"],
        "A_D_skip": _A_in["D_skip"],
        "B_x": _B_in["x"],
        "B_w_gate": _B_in["w_gate"],
        "B_w_up": _B_in["w_up"],
        "B_w_down": _B_in["w_down"],
        "gate_w": _w((lambda *s: torch.randn(*s, dtype=torch.bfloat16) * 0.05)(576) * 16.0),
    }

def reference(A_u, A_log_A_real, A_A_imag, A_C_real, A_C_imag, A_log_dt, A_D_skip, B_x, B_w_gate, B_w_up, B_w_down, gate_w):
    def _A_ref(u, log_A_real, A_imag, C_real, C_imag, log_dt, D_skip):
        L = u.shape[1]
        dt = torch.exp(log_dt)
        A = -torch.exp(log_A_real) + 1j * A_imag
        C = (C_real + 1j * C_imag) * dt[:, None]
        pos = (lambda x, dt: x.to(dt))(torch.arange(L), log_dt.dtype)
        P = torch.exp((A * dt[:, None])[:, :, None] * pos[None, None, :])
        K = 2.0 * torch.einsum("dn,dnl->dl", C, P).real
        L2 = 2 * L
        u_t = (lambda x, *d: x.permute(*d))(u, 0, 2, 1)
        Kf = (lambda x, *a, **k: torch.fft.rfft(x.float(), *a, **k))(K, L2)
        Uf = (lambda x, *a, **k: torch.fft.rfft(x.float(), *a, **k))(u_t, L2)
        y = (lambda x, *a, **k: torch.fft.irfft(x, *a, **k).to(torch.bfloat16))(Uf * Kf[None, :, :], L2)[:, :, :L]
        y = (lambda x, *d: x.permute(*d))(y, 0, 2, 1)
        return y + u * D_skip[None, None, :]

    def _B_ref(x, w_gate, w_up, w_down):
        return (_gelu(x @ w_gate) * (x @ w_up)) @ w_down

    x = A_u
    g = _sigmoid((x * gate_w).sum(-1, keepdims=True))
    a = _A_ref(x, A_log_A_real, A_A_imag, A_C_real, A_C_imag, A_log_dt, A_D_skip)
    b = _B_ref(x, B_w_gate, B_w_up, B_w_down)
    return g * a + (1 - g) * b
```

```python
class Asm:
    def __init__(self):
        self.lines = []
        self.vm = []
        self.lg = []
        self.lbl = 0
        self.mute = False
        self.waits = []
    def __call__(self, s):
        if self.mute: return
        for l in s.split("\n"):
            l = l.strip()
            if l:
                self.lines.append("    " + l if not l.endswith(":") else l)
    def c(self, s):
        if not self.mute: self.lines.append("    ; " + s)
    def label(self, name):
        if not self.mute: self.lines.append(name + ":")
    def newlabel(self, base="L"):
        self.lbl += 1
        return f"{base}_{self.lbl}"
    def text(self):
        return "\n".join(self.lines) + "\n"
    def vm_issue(self, tag): self.vm.append(tag); assert len(self.vm) <= 63, len(self.vm)
    def lg_issue(self, tag): self.lg.append(tag); assert len(self.lg) <= 15, len(self.lg)
    @staticmethod
    def _need(q, pred):
        last = -1
        for i, t in enumerate(q):
            if pred(t): last = i
        if last < 0: return None
        return len(q) - 1 - last
    def wait(self, vm=None, lg=None, lg0=False, override=None):
        parts = []
        nv = self._need(self.vm, vm) if vm else None
        nl = self._need(self.lg, lg) if lg else None
        if lg0: nl = 0
        if vm is not None:
            self.waits.append(nv)
            if override is not None:
                o = override.pop(0)
                if o is not None:
                    assert nv is None or o <= nv, (o, nv)
                    nv = o
                else:
                    assert nv is None
        if nv is not None:
            self.vm = self.vm[max(0, len(self.vm) - nv):] if nv > 0 else []
            parts.append(f"vmcnt({nv})")
        if nl is not None:
            self.lg = self.lg[len(self.lg) - nl:] if nl > 0 else []
            parts.append(f"lgkmcnt({nl})")
        if parts: self("s_waitcnt " + " ".join(parts))
    def wait_all(self):
        self.vm = []; self.lg = []
        self("s_waitcnt vmcnt(0) lgkmcnt(0)")

def vr(base, n=1):
    return f"v{base}" if n == 1 else f"v[{base}:{base+n-1}]"
def ar(base, n=1):
    return f"a{base}" if n == 1 else f"a[{base}:{base+n-1}]"
def sr(base, n=1):
    return f"s{base}" if n == 1 else f"s[{base}:{base+n-1}]"

def kernel_desc(name, vgpr, sgpr, accum):
    return f""".section .rodata,"a"
.p2align 6
.amdhsa_kernel {name}
  .amdhsa_next_free_vgpr {vgpr}
  .amdhsa_next_free_sgpr {sgpr}
  .amdhsa_accum_offset {accum}
  .amdhsa_group_segment_fixed_size 0
  .amdhsa_kernarg_size 120
  .amdhsa_user_sgpr_count 2
  .amdhsa_user_sgpr_kernarg_segment_ptr 1
  .amdhsa_system_sgpr_workgroup_id_x 1
  .amdhsa_float_denorm_mode_32 3
  .amdhsa_float_denorm_mode_16_64 3
.end_amdhsa_kernel
.text
"""

def spread(nslots, fill, start=0, end=None):
    end = nslots if end is None else end
    k = end - start
    out = [[] for _ in range(nslots)]
    total = len(fill); done = 0
    for i in range(k):
        upto = (total * (i + 1)) // k
        out[start + i] = fill[done:upto]
        done = upto
    return out
```

```python
from asmlib import *
from layout import *
import os, struct
OPT = set(os.environ.get("K1OPT", "").split(","))
def f2u(x): return struct.unpack("<I", struct.pack("<f", x))[0]

A_SET = 0
P_SET = 64
WF = 128
GT = 152
HP = 160
V_TR = 168
V_WO = 171
V_XO = 175
V_HOFF = 179
V_C2 = 180
V_C1 = 181
V_LANE = 182
V_PF = 183
V_DUM = 184
V_T = 186
XV = 224
V_XR = P_SET

S_X, S_W, S_H = 8, 12, 16
S_WAVE, S_MT, S_UG, S_NU, S_CNT, S_M0W, S_XB, S_HO0, S_HO1, S_T0, S_T1, S_SHORT = range(20, 32)
S_WC = 32
S_XC = 41

def XF(s, tt):
    if s < 32: return ar(8*s + 4*tt, 4)
    return vr(XV + 8*(s-32) + 4*tt, 4)

XI = [2, 4, 6, 8, 0, 2, 4, 6, 8]
SG = [3, 5, 7, 9, 1, 3, 5, 7, 9]

GELU_C1 = -2.0 * 0.7978845608028654 * 1.4426950408889634
GELU_C2 = GELU_C1 * 0.044715
HSTORE_FLAGS = os.environ.get("HFLAGS", "")

NST = [0]
def stamp(a, on):
    if not on: return
    i = NST[0]; NST[0] += 1
    assert i < 17
    a(f"s_memrealtime s[{66+2*i}:{67+2*i}]")

def stamp_cyc(a, on):
    if not on: return
    i = NST[0]; NST[0] += 1
    assert i < 17
    a(f"s_memtime s[{66+2*i}:{67+2*i}]")

def stamp_store2(a, kidx=0):
    n = NST[0]
    a("s_waitcnt lgkmcnt(0)")
    a(f"s_add_u32 s56, s4, {0x3100000 + kidx*0x40000}\ns_addc_u32 s57, s5, 0\ns_mov_b32 s58, 0x40000\ns_mov_b32 s59, 0x20000")
    a(f"s_lshl_b32 s50, s2, 2\ns_add_u32 s50, s50, s{S_WAVE}\ns_lshl_b32 s50, s50, 7")
    a("v_mov_b32 v200, s50")
    a(f"v_cmp_eq_u32 vcc, 0, v{V_LANE}")
    a("s_and_saveexec_b64 s[52:53], vcc")
    for i in range(n):
        a(f"v_mov_b32 v201, s{66+2*i}")
        a(f"buffer_store_dword v201, v200, s[56:59], 0 offen offset:{4*i}")
    a("s_mov_b64 exec, s[52:53]")

def dma_w(c, slot, i, tag):
    return [((slot, None, f"buffer_load_dwordx4 v{V_WO+i}, s[{S_W}:{S_W+3}], s{S_WC+c} offen offset:{i*1024} lds"), 8 + (8 if i == 0 else 0), tag, None)]
def dma_x(c, slot, i, tag):
    return [((slot, None, f"buffer_load_dwordx4 v{V_XO+i}, s[{S_X}:{S_X+3}], s{S_XC+c} offen offset:{i*1024} lds"), 8 + (8 if i == 0 else 0), tag, None)]
class Emit:
    def __init__(self, a):
        self.a = a; self.m0 = None; self.xc = None
    def __call__(self, items):
        a = self.a
        for (ins, cost, vt, lt) in items:
            if isinstance(ins, tuple):
                slot, xc, txt = ins
                pre = 0
                if self.m0 != slot:
                    a(f"s_add_u32 m0, s{S_M0W}, {slot*16384}"); self.m0 = slot; pre = 1
                if xc is not None and self.xc != xc:
                    a(f"s_add_u32 s{S_T0}, s{S_XB}, {xc*128}"); self.xc = xc; pre = 0
                if pre: a("s_nop 0")
                a(txt)
            else:
                a(ins)
            if vt: a.vm_issue(vt)
            if lt: a.lg_issue(lt)
def adv_w():
    return [(f"s_add_u32 s{S_W}, s{S_W}, 128", 4, None, None), (f"s_addc_u32 s{S_W+1}, s{S_W+1}, 0", 4, None, None),
            (f"s_sub_u32 s{S_W+2}, s{S_W+2}, 128", 4, None, None)]
def pf_w(off):
    return [(f"buffer_load_dword v{V_DUM}, v{V_PF}, s[{S_W}:{S_W+3}], 0 offen offset:{off}", 8, "pf", None)]

def wread(s, k, slot):
    mat, rd = k >> 1, k & 1
    sp = s % 4
    off = slot*16384 + mat*8192 + sp*2048 + rd*512
    win, off = off >> 16, off & 0xffff
    dst = WF + 8*(s % 3) + 4*mat + 2*rd
    return f"ds_read_b64_tr_b16 {vr(dst,2)}, v{V_TR+win} offset:{off}"

def xread(s, tt):
    c = s // 4; sp = s % 4
    off = XI[c]*16384 + tt*4096
    win, off = off >> 16, off & 0xffff
    return f"ds_read_b128 {XF(s,tt)}, v{V_XR + 4*win + sp} offset:{off}"

def mfma(s, m, first_c0, last_to_p):
    tt, mat = [(0,0),(0,1),(1,1),(1,0)][m]
    acc = A_SET + 32*mat + 16*tt
    dst = (P_SET + 32*mat + 16*tt) if last_to_p else acc
    src = "0" if first_c0 else vr(acc, 16)
    wf = WF + 8*(s % 3) + 4*mat
    return f"v_mfma_f32_32x32x16_bf16 {vr(dst,16)}, {vr(wf,4)}, {XF(s,tt)}, {src}"

def gelu_ops():
    ops = []
    for grp in range(8):
        tt, sp, half = grp >> 2, (grp >> 1) & 1, grp & 1
        g = [P_SET + 16*tt + 8*sp + 4*half + i for i in range(4)]
        u = [x + 32 for x in g]
        t = [GT + i for i in range(4)]
        p = [GT + 4 + i for i in range(4)]
        hp = HP + 4*((grp >> 1) & 1) + 2*half
        for i in range(4): ops.append((f"v_mul_f32 v{t[i]}, v{g[i]}, v{g[i]}", 4, None, None))
        for i in range(4): ops.append((f"v_fma_f32 v{t[i]}, v{t[i]}, v{V_C2}, v{V_C1}", 5, None, None))
        for i in range(4): ops.append((f"v_mul_f32 v{t[i]}, v{t[i]}, v{g[i]}", 4, None, None))
        for i in range(4): ops.append((f"v_exp_f32 v{t[i]}, v{t[i]}", 8, None, None))
        for i in range(4): ops.append((f"v_mul_f32 v{p[i]}, v{g[i]}, v{u[i]}", 4, None, None))
        for i in range(4): ops.append((f"v_add_f32 v{t[i]}, 1.0, v{t[i]}", 4, None, None))
        for i in range(4): ops.append((f"v_rcp_f32 v{t[i]}, v{t[i]}", 8, None, None))
        for i in range(4): ops.append((f"v_mul_f32 v{p[i]}, v{p[i]}, v{t[i]}", 4, None, None))
        ops.append((f"v_cvt_pk_bf16_f32 v{hp}, v{p[0]}, v{p[1]}", 5, None, None))
        ops.append((f"v_cvt_pk_bf16_f32 v{hp+1}, v{p[2]}, v{p[3]}", 5, None, None))
        if half == 1:
            base = HP + 4*((grp >> 1) & 1)
            so = S_HO0 if tt == 0 else S_HO1
            ops.append((f"buffer_store_dwordx4 {vr(base,4)}, v{V_HOFF}, s[{S_H}:{S_H+3}], s{so} offen offset:{sp*1024} {HSTORE_FLAGS}", 20, "st", None))
    return ops

BUDGET = 24
def unit(a, first, override=None, stamps=False):
    fixed = [[] for _ in range(144)]
    pre = [None]*36
    for s in range(36):
        s2 = s + 2
        if s2 < 36:
            c2 = s2 // 4; slot = SG[c2] if first else c2; rtag = f"r{s2}"
        else:
            slot = 0; rtag = f"r{s2-36}"
        for m in range(4):
            if first or "noread" not in OPT:
                fixed[4*s+m].append((wread(s2 % 36, m, slot), 4, None, rtag))
        if first and s2 < 36:
            for tt in range(2):
                fixed[4*s+tt].append((xread(s2, tt), 4, None, rtag))
    def put(step, items, m=None):
        if m is None:
            best = min((1, 3, 2, 0), key=lambda mm: sum(x[1] for x in fixed[4*step+mm]))
            m = best
        fixed[4*step+m].extend(items)
    if first:
        k = 0
        for c in (3, 4):
            for i in range(4): put(k // 4, dma_x(c, XI[c], i, f"x{c}")); k += 1
            for i in range(4): put(k // 4, dma_w(c, SG[c], i, f"w{c}")); k += 1
        for c in range(4):
            st = 4*c + 3
            for i in range(4): put(st + i // 2, dma_x(c+5, XI[c], i, f"x{c+5}"))
            for i in range(4): put(st + 2 + i // 2, dma_w(c+5, SG[c], i, f"w{c+5}"))
        put(19, adv_w(), 0)
        for c in range(4, 7):
            st = 4*c + 3
            n0 = 2*(c-4)
            for i in range(4): put(st + i // 2, dma_w(n0, XI[c], i, f"n{n0}"))
            for i in range(4): put(st + 2 + i // 2, dma_w(n0+1, SG[c], i, f"n{n0+1}"))
    elif "nodma" not in OPT:
        k = 0
        for c in (6, 7, 8):
            for i in range(4):
                st = [0,0,1,1, 2,3,4,5, 6,7,8,9][k]
                put(st, dma_w(c, c, i, f"c{c}")); k += 1
        if 'pf' in OPT: put(10, pf_w(256))
        put(11, adv_w() + [(f"s_cselect_b32 s{S_W+2}, 0, s{S_W+2}", 4, None, None)], 0) if False else None
        for j, cs in ((11, (0, 1, 2)), (23, (3, 4, 5))):
            k = 0
            for c in cs:
                for i in range(4):
                    st = j + [0,0,1,1, 2,3,4,5, 6,7,8,9][k]
                    put(st, dma_w(c, c, i, f"n{c}")); k += 1
    g_ops = [] if (first or "nogelu" in OPT) else gelu_ops()
    if "nostore" in OPT: g_ops = [x for x in g_ops if x[2] is None]
    g0, g1 = 4, 4*35
    room = [max(0, BUDGET - sum(x[1] for x in fixed[g])) if g0 <= g < g1 else 0 for g in range(144)]
    tot_room = sum(room); tot_cost = sum(x[1] for x in g_ops)
    gel = [[] for _ in range(144)]
    acc_room = 0; used = 0; gi = 0
    for g in range(144):
        acc_room += room[g]
        target = tot_cost * acc_room / tot_room if tot_room else 0
        while gi < len(g_ops) and used + g_ops[gi][1] / 2 <= target:
            gel[g].append(g_ops[gi]); used += g_ops[gi][1]; gi += 1
    assert gi == len(g_ops)
    em = Emit(a)
    for s in range(36):
        bar = (s % 4 == 3) if first else (s % 12 == 11)
        if bar:
            if first:
                c = s // 4
                if c < 7:
                    need = (f"x{c+2}", f"w{c+2}")
                elif c == 7:
                    need = ("n0",)
                else:
                    need = ("n0", "n1", "n2", "n3")
            else:
                j = s // 12
                need = [("c3", "c4", "c5", "c6"), ("c7", "c8", "n0"), ("n1", "n2", "n3")][j]
            a.wait(vm=lambda t: t in need, lg=lambda t: t == f"r{s}", override=override)
            if first or "nobar" not in OPT: a("s_barrier")
            if first and 'fine' not in OPT and ('cyc' not in OPT or s == 35): stamp(a, stamps)
            if (not first) and s == 11:
                a(f"s_add_u32 s{S_W}, s{S_W}, 128\ns_addc_u32 s{S_W+1}, s{S_W+1}, 0\ns_sub_u32 s{S_W+2}, s{S_W+2}, 128")
                a(f"s_cmp_eq_u32 s{S_CNT}, 1\ns_cselect_b32 s{S_W+2}, 0, s{S_W+2}")
        else:
            a.wait(lg=lambda t: t == f"r{s}")
        for m in range(4):
            a(mfma(s, m, s == 0, s == 35))
            em(fixed[4*s+m] + gel[4*s+m])
    a.vm = [("c" + t[1:]) if t[0] == "n" else t for t in a.vm]

def gen_k1(a, name, stamps=False, tail=None):
    NST[0] = 0
    a(f".globl {name}\n.p2align 8\n.type {name},@function")
    a.label(name)
    a("s_cmp_ge_u32 s2, 256")
    a(f"s_cbranch_scc1 {name}_end")
    a(f"s_load_dwordx2 s[8:9], s[0:1], {KA_U}")
    a(f"s_load_dwordx4 s[92:95], s[0:1], {KA_WG}")
    a(f"s_load_dwordx2 s[4:5], s[0:1], {KA_WS}")
    stamp(a, stamps)
    a(f"v_and_b32 v{V_LANE}, 63, v0")
    a(f"v_lshrrev_b32 v{V_T}, 6, v0")
    a("s_nop 0")
    a(f"v_readfirstlane_b32 s{S_WAVE}, v{V_T}")
    a("s_and_b32 s3, s2, 7")
    a("s_lshr_b32 s62, s2, 3")
    a("s_and_b32 s63, s3, 1")
    a("s_lshl_b32 s63, s63, 3")
    a("s_and_b32 s50, s62, 7")
    a(f"s_add_u32 s{S_MT}, s63, s50")
    a("s_lshr_b32 s51, s62, 3")
    a("s_lshr_b32 s52, s3, 1")
    a("s_mul_i32 s52, s52, 18")
    a("s_mul_i32 s53, s51, 9")
    a("s_add_u32 s53, s53, 1")
    a("s_lshr_b32 s53, s53, 1")
    a(f"s_add_u32 s{S_UG}, s52, s53")
    a("s_and_b32 s54, s51, 1")
    a(f"s_sub_u32 s{S_NU}, 5, s54")
    a(f"s_lshl_b32 s{S_SHORT}, s3, 4")
    a("s_lshr_b32 s55, s51, 1")
    a("s_lshl_b32 s55, s55, 3")
    a(f"s_add_u32 s{S_SHORT}, s{S_SHORT}, s55")
    a(f"s_add_u32 s{S_SHORT}, s{S_SHORT}, s50")
    L_ = V_LANE; T = V_T
    a(f"s_and_b32 s56, s{S_WAVE}, 1")
    a(f"s_lshr_b32 s57, s{S_WAVE}, 1")
    a("s_mul_i32 s58, s50, 72")
    a("s_mul_i32 s59, s56, 36")
    a("s_add_u32 s58, s58, s59")
    a(f"v_add_u32 v{T}, s58, v{L_}")
    a("s_movk_i32 s60, 9216")
    a(f"v_mul_lo_u32 v{V_PF}, v{T}, s60")
    a(f"v_mov_b32 v{T+1}, 0x7fffffff")
    a(f"v_cmp_gt_u32 vcc, 36, v{L_}")
    a("s_nop 1")
    a(f"v_cndmask_b32 v{V_PF}, v{T+1}, v{V_PF}, vcc")
    a(f"s_lshl_b32 s58, s51, 2\ns_add_u32 s58, s58, s{S_WAVE}\ns_mul_i32 s58, s58, 9216")
    a(f"s_mul_i32 s59, s{S_MT}, {128*1152}\ns_add_u32 s61, s58, s59")
    a(f"v_lshlrev_b32 v{T+2}, 7, v{L_}")
    a(f"v_add_u32 v{T+3}, 8192, v{T+2}")
    a(f"v_cmp_gt_u32 vcc, 8, v{L_}")
    a("s_nop 1")
    a(f"v_cndmask_b32 v{T+3}, v{T+1}, v{T+3}, vcc")
    a(f"v_lshrrev_b32 v{T+4}, 3, v{L_}")
    a(f"v_mul_lo_u32 v{V_WO}, v{T+4}, s60")
    a(f"v_lshrrev_b32 v{T+5}, 4, v{L_}")
    a(f"v_and_b32 v{T+6}, 1, v{T+5}")
    a(f"v_lshlrev_b32 v{T+6}, 2, v{T+6}")
    a(f"v_and_b32 v{T+7}, 7, v{L_}")
    a(f"v_xor_b32 v{T+6}, v{T+6}, v{T+7}")
    a(f"v_lshlrev_b32 v{T+6}, 4, v{T+6}")
    a(f"v_add_u32 v{V_WO}, v{V_WO}, v{T+6}")
    for i in range(1, 4):
        a(f"v_add_u32 v{V_WO+i}, {i*(73728-1024)}, v{V_WO}")
    a("s_movk_i32 s60, 1152")
    a(f"v_mul_lo_u32 v{T+8}, v{T+4}, s60")
    a(f"v_xor_b32 v{T+6}, v{T+7}, v{T+5}")
    a(f"v_lshlrev_b32 v{T+6}, 4, v{T+6}")
    a(f"v_add_u32 v{V_XO}, v{T+8}, v{T+6}")
    a(f"v_xor_b32 v{T+6}, 64, v{T+6}")
    a(f"v_add_u32 v{V_XO+1}, v{T+8}, v{T+6}")
    a(f"v_add_u32 v{V_XO+1}, {9216-1024}, v{V_XO+1}")
    a(f"v_add_u32 v{V_XO+2}, {2*(9216-1024)}, v{V_XO}")
    a(f"v_add_u32 v{V_XO+3}, {2*(9216-1024)}, v{V_XO+1}")
    a(f"s_lshl_b32 s{S_M0W}, s{S_WAVE}, 12")
    a(f"s_lshl_b32 s58, s{S_MT}, 7")
    a(f"s_lshl_b32 s59, s{S_WAVE}, 5")
    a("s_add_u32 s58, s58, s59")
    a(f"s_mul_i32 s{S_XB}, s58, 1152")
    a("s_lshl_b32 s58, s51, 1\ns_add_u32 s58, s58, s50")
    if "norot" in OPT: a("s_mov_b32 s58, 0")
    a("s_cmp_ge_u32 s58, 9\ns_cselect_b32 s59, 9, 0\ns_sub_u32 s58, s58, s59")
    a("s_mul_i32 s64, s56, 294912")
    for j in range(9):
        a(f"s_mul_i32 s59, s58, 589824\ns_add_u32 s{S_WC+j}, s59, s64")
        a(f"s_lshl_b32 s59, s58, 7\ns_add_u32 s{S_XC+j}, s59, s{S_XB}")
        if j < 8:
            a("s_add_u32 s58, s58, 1\ns_cmp_eq_u32 s58, 9\ns_cselect_b32 s58, 0, s58")
    a("s_waitcnt lgkmcnt(0)")
    stamp(a, stamps)
    a(f"s_mov_b32 s10, {X_BYTES}\ns_mov_b32 s11, 0x20000")
    a(f"s_cmp_lt_u32 s{S_WAVE}, 2")
    a("s_cselect_b32 s12, s92, s94\ns_cselect_b32 s13, s93, s95")
    a(f"s_lshl_b32 s58, s{S_UG}, 7")
    a("s_add_u32 s12, s12, s58\ns_addc_u32 s13, s13, 0")
    a(f"s_sub_u32 s14, {W_BYTES}, s58\ns_mov_b32 s15, 0x20000")
    if "pf" in OPT:
        a(f"buffer_load_dword v{V_DUM}, v{V_PF}, s[{S_W}:{S_W+3}], 0 offen"); a.vm_issue("pf")
        a(f"buffer_load_dword v{V_DUM}, v{T+2}, s[{S_X}:{S_X+3}], s61 offen"); a.vm_issue("pf")
        a(f"buffer_load_dword v{V_DUM}, v{T+3}, s[{S_X}:{S_X+3}], s61 offen"); a.vm_issue("pf")
    stamp(a, stamps and "fine" in OPT)
    emit = Emit(a)
    for c in range(3):
        for i in range(4): emit(dma_x(c, XI[c], i, f"x{c}"))
        for i in range(4): emit(dma_w(c, SG[c], i, f"w{c}"))
        stamp(a, stamps and "fine" in OPT)
        if c == 0 and "pf" in OPT:
            emit(pf_w(128)); emit(pf_w(256))
            stamp(a, stamps and "fine" in OPT)
    a(f"s_add_u32 s16, s4, {WS_H}\ns_addc_u32 s17, s5, 0" if WS_H else "s_mov_b32 s16, s4\ns_mov_b32 s17, s5")
    a(f"s_mov_b32 s18, {H_BYTES}\ns_mov_b32 s19, 0x20000")
    a(f"v_lshlrev_b32 v{V_HOFF}, 4, v{L_}")
    a(f"v_mov_b32 v{V_C2}, 0x{f2u(GELU_C2):08x}")
    a(f"v_mov_b32 v{V_C1}, 0x{f2u(GELU_C1):08x}")
    a(f"v_lshrrev_b32 v{T}, 5, v{L_}")
    a(f"v_lshlrev_b32 v{T}, 3, v{T}")
    a(f"v_bfe_u32 v{T+2}, v{L_}, 2, 2")
    a(f"v_add_u32 v{T}, v{T}, v{T+2}")
    a(f"v_lshlrev_b32 v{T}, 7, v{T}")
    a(f"v_bfe_u32 v{T+3}, v{L_}, 4, 1")
    a(f"v_lshlrev_b32 v{T+3}, 1, v{T+3}")
    a(f"v_bfe_u32 v{T+4}, v{L_}, 1, 1")
    a(f"v_add_u32 v{T+3}, v{T+3}, v{T+4}")
    a(f"s_lshl_b32 s58, s56, 2")
    a(f"v_add_u32 v{T+3}, s58, v{T+3}")
    a(f"v_lshrrev_b32 v{T+2}, 1, v{T+2}")
    a(f"v_lshlrev_b32 v{T+2}, 2, v{T+2}")
    a(f"v_xor_b32 v{T+3}, v{T+3}, v{T+2}")
    a(f"v_lshlrev_b32 v{T+3}, 4, v{T+3}")
    a(f"v_add_u32 v{T}, v{T}, v{T+3}")
    a(f"v_and_b32 v{T+4}, 1, v{L_}")
    a(f"v_lshlrev_b32 v{T+4}, 3, v{T+4}")
    a(f"v_add_u32 v{V_TR}, v{T}, v{T+4}")
    a(f"v_add_u32 v{V_TR+1}, 0x10000, v{V_TR}")
    a(f"v_add_u32 v{V_TR+2}, 0x20000, v{V_TR}")
    a(f"v_and_b32 v{T}, 31, v{L_}")
    a(f"v_bfe_u32 v{T+1}, v{L_}, 1, 3")
    a(f"v_lshrrev_b32 v{T+2}, 5, v{L_}")
    a(f"v_xor_b32 v{T+1}, v{T+1}, v{T+2}")
    a(f"v_lshlrev_b32 v{T+1}, 4, v{T+1}")
    a(f"s_lshl_b32 s58, s57, 6")
    a(f"v_add_u32 v{T}, s58, v{T}")
    a(f"v_lshlrev_b32 v{T}, 7, v{T}")
    a(f"v_add_u32 v{T}, v{T}, v{T+1}")
    for sp in range(4):
        a(f"v_xor_b32 v{V_XR+sp}, {sp<<5}, v{T}")
        a(f"v_add_u32 v{V_XR+4+sp}, 0x10000, v{V_XR+sp}")
        a(f"v_add_u32 v{V_XR+8+sp}, 0x20000, v{V_XR+sp}")
    a(f"s_lshl_b32 s58, s{S_MT}, 2")
    a("s_lshl_b32 s59, s57, 1")
    a("s_add_u32 s58, s58, s59")
    a("s_mul_i32 s58, s58, 288")
    a("s_lshl_b32 s59, s56, 1")
    a("s_add_u32 s58, s58, s59")
    a("s_lshl_b32 s58, s58, 10")
    a(f"s_lshl_b32 s59, s{S_UG}, 12")
    a(f"s_add_u32 s{S_HO0}, s58, s59")
    a(f"s_add_u32 s{S_HO1}, s{S_HO0}, {288*1024}")
    stamp(a, stamps)
    a.wait(vm=lambda t: t in ("x0", "w0", "x1", "w1"))
    a("s_barrier")
    stamp(a, stamps)
    for s in range(2):
        for k in range(4): a(wread(s, k, SG[0])); a.lg_issue(f"r{s}")
        for tt in range(2): a(xread(s, tt)); a.lg_issue(f"r{s}")
    unit(a, True, stamps=stamps)
    a(f"s_sub_u32 s{S_CNT}, s{S_NU}, 1")
    sv_vm, sv_lg = list(a.vm), list(a.lg)
    a.mute = True
    a.waits = []; unit(a, False); w1 = list(a.waits)
    a.waits = []; unit(a, False); w2 = list(a.waits)
    a.waits = []; unit(a, False); w3 = list(a.waits)
    assert w2 == w3
    a.mute = False
    ov = [min([v for v in (x, y) if v is not None], default=None) for x, y in zip(w1, w2)]
    print('loop vm waits', w1, w2)
    a.vm, a.lg = sv_vm, sv_lg
    stamp_cyc(a, stamps and "cyc" in OPT)
    a(".p2align 6")
    a.label(f"{name}_loop")
    unit(a, False, override=list(ov))
    a(f"s_add_u32 s{S_HO0}, s{S_HO0}, 4096")
    a(f"s_add_u32 s{S_HO1}, s{S_HO1}, 4096")
    a(f"s_sub_u32 s{S_CNT}, s{S_CNT}, 1")
    a(f"s_cmp_lg_u32 s{S_CNT}, 0")
    a(f"s_cbranch_scc1 {name}_loop")
    stamp_cyc(a, stamps and "cyc" in OPT)
    stamp(a, stamps)
    a("s_nop 7\ns_nop 7")
    for ins, cost, vt, lt in gelu_ops():
        a(ins)
    if tail: tail(a)
    a.wait_all()
    stamp(a, stamps)
    if stamps: stamp_store2(a, 0)
    a.label(f"{name}_end")
    a("s_endpgm")

if __name__ == "__main__":
    a = Asm()
    a("; @launch kernel=k1_kernel grid=(256,1,1) block=(256,1,1) lds=163840")
    a('.amdgcn_target "amdgcn-amd-amdhsa--gfx950"')
    a(".text")
    gen_k1(a, "k1_kernel", stamps=True)
    a.lines.append(kernel_desc("k1_kernel", 512, 102, 256))
    open(os.environ.get("K1OUT", "k1_test.s"), "w").write(a.text())
    print("lines", len(a.lines))
```

```python
from asmlib import *
from layout import *
import k1
from k1 import stamp, stamp_store2, NST, f2u
import os
OPT = set(os.environ.get("K2OPT", "").split(","))

V_LANE = k1.V_LANE
S_WAVE = k1.S_WAVE
ACC = 0
FB = 96
V_A = 136
V_B = 142
V_HD = 144
V_WD = 145
V_T = 150
S_HS, S_WS, S_PS = 8, 12, 16
S_M0H, S_M0W, S_HB, S_WB, S_ST, S_HO, S_WO, S_CNT, S_T0, S_T1 = range(21, 31)
NSLOT = 6; SLOT = 20480

def frA(buf, dtl): return FB + 20*buf + 4*dtl
def frB(buf, tt): return FB + 20*buf + 12 + 4*tt

def g2_reads(k, slot):
    buf = k & 1; ks = k & 1
    r = []
    def rb(tt):
        off = slot*SLOT + tt*2048 + ks*1024
        win, off = off >> 16, off & 0xffff
        return f"ds_read_b128 {vr(frB(buf,tt),4)}, v{V_B+win} offset:{off}"
    def ra(dtl, rd):
        off = slot*SLOT + 8192 + (2*ks+rd)*3072
        win, off = off >> 16, off & 0xffff
        return f"ds_read_b64_tr_b16 {vr(frA(buf,dtl)+2*rd,2)}, v{V_A+3*win+dtl} offset:{off}"
    return [(rb(0), "B0"), (ra(0,0), "A0"), (ra(0,1), "A0"), (rb(1), "B1"), (ra(1,0), "A1"), (ra(1,1), "A1"), (ra(2,0), "A2"), (ra(2,1), "A2")]

def g2_dma(a, slot, tag):
    L = []
    L.append((f"s_add_u32 m0, s{S_M0H}, {slot*SLOT}", None))
    L.append((f"s_nop 0", None))
    L.append((f"buffer_load_dwordx4 v{V_HD}, s[{S_HS}:{S_HS+3}], s{S_HO} offen lds", tag))
    L.append((f"buffer_load_dwordx4 v{V_HD}, s[{S_HS}:{S_HS+3}], s{S_HO} offen offset:1024 lds", tag))
    L.append((f"s_add_u32 m0, s{S_M0W}, {slot*SLOT}", None))
    L.append((f"s_nop 0", None))
    for seg in range(3):
        L.append((f"buffer_load_dwordx4 v{V_WD+seg}, s[{S_WS}:{S_WS+3}], s{S_WO} offen offset:{seg*1024} lds", tag))
    L.append((f"s_add_u32 s{S_ST}, s{S_ST}, 1", None))
    L.append((f"s_cmp_eq_u32 s{S_ST}, 36", None))
    L.append((f"s_cselect_b32 s{S_ST}, 0, s{S_ST}", None))
    L.append((f"s_lshl_b32 s{S_T0}, s{S_ST}, 11", None))
    L.append((f"s_add_u32 s{S_HO}, s{S_HB}, s{S_T0}", None))
    L.append((f"s_mul_i32 s{S_T0}, s{S_ST}, {32*1152}", None))
    L.append((f"s_add_u32 s{S_WO}, s{S_WB}, s{S_T0}", None))
    return L

def g2_block(a, first, last, override=None):
    for k in range(12):
        st = k // 2; ks = k & 1
        dm = []
        if ks == 1:
            nxt = (st + 1) % 6
            a.wait(vm=lambda t: t == f"s{nxt}", override=override)
            a("s_barrier")
            fslot = (st - 1) % 6
            dm = g2_dma(a, fslot, f"s{fslot}")
        k1_ = (k + 1) % 12
        rds = g2_reads(k1_, k1_ // 2)
        order = [(0,0),(0,1),(1,0),(1,1),(2,0),(2,1)]
        ri = 0; di = 0
        for mi, (dtl, tt) in enumerate(order):
            need = {f"B{tt}@{k}", f"A{dtl}@{k}"}
            a.wait(lg=lambda t: t in need)
            acc = ACC + 16*(2*dtl + tt)
            src = "0" if (first and k == 0) else vr(acc,16)
            a(f"v_mfma_f32_32x32x16_bf16 {vr(acc,16)}, {vr(frA(k&1,dtl),4)}, {vr(frB(k&1,tt),4)}, {src}")
            n = [2, 1, 2, 1, 1, 1][mi]
            for _ in range(n):
                ins, tg = rds[ri]; ri += 1
                a(ins); a.lg_issue(f"{tg}@{k1_}")
            nd = (len(dm) * (mi + 1)) // 6
            while di < nd:
                ins, tg = dm[di]; di += 1
                a(ins)
                if tg: a.vm_issue(tg)

def gen_gemm2(a, name, stamps):
    L_ = V_LANE; T = V_T
    a(f"s_load_dwordx2 s[12:13], s[0:1], {KA_WD}")
    a("s_lshr_b32 s50, s3, 1")
    a("s_and_b32 s51, s3, 1\ns_lshl_b32 s51, s51, 3\ns_and_b32 s52, s62, 7\ns_add_u32 s51, s51, s52")
    a("s_lshr_b32 s53, s62, 3")
    a(f"s_lshr_b32 s54, s{S_WAVE}, 1")
    a(f"s_and_b32 s55, s{S_WAVE}, 1")
    a("s_mul_i32 s56, s53, 12\ns_lshl_b32 s57, s52, 2\ns_add_u32 s56, s56, s57")
    if "norot" in OPT: a("s_mov_b32 s56, 0")
    a(f"s_cmp_ge_u32 s56, 36\ns_cselect_b32 s57, 36, 0\ns_sub_u32 s{S_ST}, s56, s57")
    a(f"s_lshl_b32 s56, s51, 2\ns_add_u32 s56, s56, s{S_WAVE}\ns_mul_i32 s56, s56, 288\ns_mul_i32 s57, s50, 72\ns_add_u32 s56, s56, s57\ns_lshl_b32 s{S_HB}, s56, 10")
    a(f"s_mul_i32 s56, s50, 1152\ns_lshl_b32 s57, s{S_WAVE}, 3\ns_add_u32 s56, s56, s57\ns_mul_i32 s56, s56, 1152\ns_mul_i32 s57, s53, 384\ns_add_u32 s{S_WB}, s56, s57")
    a(f"s_lshl_b32 s{S_T0}, s{S_ST}, 11\ns_add_u32 s{S_HO}, s{S_HB}, s{S_T0}")
    a(f"s_mul_i32 s{S_T0}, s{S_ST}, {32*1152}\ns_add_u32 s{S_WO}, s{S_WB}, s{S_T0}")
    a(f"s_lshl_b32 s{S_M0H}, s{S_WAVE}, 11")
    a(f"s_mul_i32 s{S_M0W}, s{S_WAVE}, 3072\ns_add_u32 s{S_M0W}, s{S_M0W}, 8192")
    a(f"v_lshlrev_b32 v{V_HD}, 4, v{L_}")
    a(f"v_lshrrev_b32 v{T}, 3, v{L_}")
    a(f"v_mul_u32_u24 v{V_WD}, 1152, v{T}")
    a(f"v_bfe_u32 v{T+1}, v{L_}, 4, 1")
    a(f"v_lshlrev_b32 v{T+1}, 2, v{T+1}")
    a(f"v_and_b32 v{T+2}, 7, v{L_}")
    a(f"v_xor_b32 v{T+1}, v{T+1}, v{T+2}")
    a(f"v_lshlrev_b32 v{T+1}, 4, v{T+1}")
    a(f"v_add_u32 v{V_WD}, v{V_WD}, v{T+1}")
    a(f"v_subrev_u32 v{V_WD+1}, {1024-128}, v{V_WD}")
    a(f"v_subrev_u32 v{V_WD+2}, {2*(1024-128)}, v{V_WD}")
    for i in range(3): a(f"v_add_u32 v{V_WD+i}, 1792, v{V_WD+i}")
    a("s_waitcnt lgkmcnt(0)")
    a(f"s_sub_u32 s12, s12, 1792\ns_subb_u32 s13, s13, 0\ns_mov_b32 s14, {W_BYTES + 1792}\ns_mov_b32 s15, 0x20000")
    a(f"s_add_u32 s8, s4, {WS_H}\ns_addc_u32 s9, s5, 0\ns_mov_b32 s10, {H_BYTES}\ns_mov_b32 s11, 0x20000")
    stamp(a, stamps)
    def emit(L):
        for ins, tg in L:
            a(ins)
            if tg: a.vm_issue(tg)
    for st in range(5):
        emit(g2_dma(a, st, f"s{st}"))
    a(f"v_lshrrev_b32 v{T}, 5, v{L_}")
    a(f"v_lshlrev_b32 v{T}, 2, v{T}")
    a(f"v_bfe_u32 v{T+1}, v{L_}, 2, 2")
    a(f"v_add_u32 v{T}, v{T}, v{T+1}")
    a(f"v_lshlrev_b32 v{T}, 7, v{T}")
    a(f"v_and_b32 v{T+2}, 1, v{L_}")
    a(f"v_lshlrev_b32 v{T+2}, 1, v{T+2}")
    a(f"v_bfe_u32 v{T+3}, v{L_}, 4, 1")
    a(f"v_add_u32 v{T+2}, v{T+2}, v{T+3}")
    a(f"v_lshlrev_b32 v{T+2}, 4, v{T+2}")
    a(f"v_add_u32 v{T}, v{T}, v{T+2}")
    a(f"v_bfe_u32 v{T+2}, v{L_}, 1, 1")
    a(f"v_lshlrev_b32 v{T+2}, 3, v{T+2}")
    a(f"v_add_u32 v{T}, v{T}, v{T+2}")
    a(f"v_lshrrev_b32 v{T+1}, 1, v{T+1}")
    a(f"v_lshlrev_b32 v{T+1}, 6, v{T+1}")
    for dtl in range(3):
        a(f"s_mul_i32 s56, s55, 3\ns_add_u32 s56, s56, {dtl}\ns_and_b32 s57, s56, 1\ns_lshl_b32 s57, s57, 6\ns_lshr_b32 s56, s56, 1\ns_lshl_b32 s56, s56, 10")
        a(f"v_xor_b32 v{T+2}, s57, v{T+1}")
        a(f"v_add_u32 v{T+2}, v{T+2}, v{T}")
        a(f"v_add_u32 v{V_A+dtl}, s56, v{T+2}")
        a(f"v_add_u32 v{V_A+3+dtl}, 0x10000, v{V_A+dtl}")
    a(f"s_lshl_b32 s56, s54, 12")
    a(f"v_add_u32 v{V_B}, s56, v{V_HD}")
    a(f"v_add_u32 v{V_B+1}, 0x10000, v{V_B}")
    a.wait(vm=lambda t: t == "s0")
    a("s_barrier")
    stamp(a, stamps)
    for ins, tg in g2_reads(0, 0):
        a(ins); a.lg_issue(f"{tg}@0")
    g2_block(a, True, False)
    sv_vm, sv_lg = list(a.vm), list(a.lg)
    a.mute = True
    a.waits = []; g2_block(a, False, False); w1 = list(a.waits)
    a.waits = []; g2_block(a, False, False); w2 = list(a.waits)
    a.mute = False
    ov = [min([v for v in (x, y) if v is not None], default=None) for x, y in zip(w1, w2)]
    a.vm, a.lg = sv_vm, sv_lg
    a(f"s_mov_b32 s{S_CNT}, 5")
    a(".p2align 6")
    a.label(f"{name}_g2loop")
    g2_block_loop(a, name, ov)
    a(f"s_sub_u32 s{S_CNT}, s{S_CNT}, 1\ns_cmp_lg_u32 s{S_CNT}, 0\ns_cbranch_scc1 {name}_g2loop")
    stamp(a, stamps)
    a(f"s_add_u32 s16, s4, {WS_PART}\ns_addc_u32 s17, s5, 0\ns_mov_b32 s18, {PART_BYTES}\ns_mov_b32 s19, 0x20000")
    a("s_lshl_b32 s56, s51, 2\ns_lshl_b32 s57, s54, 1\ns_add_u32 s56, s56, s57")
    a("s_lshl_b32 s57, s50, 6\ns_add_u32 s56, s56, s57\ns_mul_i32 s56, s56, 18")
    a("s_mul_i32 s57, s53, 6\ns_add_u32 s56, s56, s57\ns_mul_i32 s57, s55, 3\ns_add_u32 s56, s56, s57\ns_lshl_b32 s56, s56, 12")
    a("s_nop 7\ns_nop 3")
    for dtl in range(3):
        for tt in range(2):
            a(f"s_add_u32 s57, s56, {(tt*18 + dtl)*4096}")
            acc = ACC + 16*(2*dtl + tt)
            for j in range(4):
                a(f"buffer_store_dwordx4 {vr(acc+4*j,4)}, v{V_HD}, s[16:19], s57 offen offset:{j*1024} {PFLAGS}")
    a("s_waitcnt vmcnt(0)")

PFLAGS = os.environ.get("PFLAGS", "")

def g2_block_loop(a, name, ov):
    for_k = []
    ovl = list(ov)
    for k in range(12):
        pass
    g2_block_hook(a, ovl)

def g2_block_hook(a, override):
    first = False
    for k in range(12):
        st = k // 2; ks = k & 1
        dm = []
        if ks == 1:
            nxt = (st + 1) % 6
            a.wait(vm=lambda t: t == f"s{nxt}", override=override)
            a("s_barrier")
            if st == 1:
                a(f"s_cmp_eq_u32 s{S_CNT}, 1\ns_cselect_b32 s{S_HS+2}, 0, s{S_HS+2}\ns_cselect_b32 s{S_WS+2}, 0, s{S_WS+2}")
            fslot = (st - 1) % 6
            dm = g2_dma(a, fslot, f"s{fslot}")
        k1_ = (k + 1) % 12
        rds = g2_reads(k1_, k1_ // 2)
        order = [(0,0),(0,1),(1,0),(1,1),(2,0),(2,1)]
        ri = 0; di = 0
        for mi, (dtl, tt) in enumerate(order):
            need = {f"B{tt}@{k}", f"A{dtl}@{k}"}
            a.wait(lg=lambda t: t in need)
            acc = ACC + 16*(2*dtl + tt)
            a(f"v_mfma_f32_32x32x16_bf16 {vr(acc,16)}, {vr(frA(k&1,dtl),4)}, {vr(frB(k&1,tt),4)}, {vr(acc,16)}")
            n = [2, 1, 2, 1, 1, 1][mi]
            for _ in range(n):
                ins, tg = rds[ri]; ri += 1
                a(ins); a.lg_issue(f"{tg}@{k1_}")
            nd = (len(dm) * (mi + 1)) // 6
            while di < nd:
                ins, tg = dm[di]; di += 1
                a(ins)
                if tg: a.vm_issue(tg)

KC_PITCH = 4160
KC_BYTES = 4*KC_PITCH
U_OFF = 2*KC_BYTES
CW_REGION = 40960
def gen_conv(a, name, stamps):
    L_ = V_LANE
    ACCc = 0
    FA = 32
    FBc = 96
    VA, VB, VUO, VYO, VKD, VUZ = 160, 161, 162, 163, 164, 165
    UPF = 208
    T = 190
    PKR = 200
    sK, sU, sY = 8, 12, 16
    sCH, sLB, sKB, sT0, sT1, sN, sKO = 21, 22, 23, 24, 25, 26, 27
    a(f"s_mul_i32 s50, s3, 6\ns_add_u32 s50, s50, s62\ns_sub_u32 s50, s50, 24\ns_lshl_b32 s50, s50, 2\ns_add_u32 s50, s50, s{S_WAVE}\ns_mul_i32 s{sCH}, s50, 3")
    a(f"s_mul_i32 s{sLB}, s{S_WAVE}, {CW_REGION}")
    a("s_waitcnt lgkmcnt(0)")
    a(f"s_add_u32 s8, s4, {WS_KREV-16}\ns_addc_u32 s9, s5, 0\ns_mov_b32 s10, {KREV_BYTES+16}\ns_mov_b32 s11, 0x20000")
    a(f"s_add_u32 s12, s4, {WS_UT}\ns_addc_u32 s13, s5, 0\ns_mov_b32 s14, {UT_BYTES}\ns_mov_b32 s15, 0x20000")
    a(f"s_add_u32 s16, s4, {WS_YT}\ns_addc_u32 s17, s5, 0\ns_mov_b32 s18, {UT_BYTES}\ns_mov_b32 s19, 0x20000")
    a(f"v_lshlrev_b32 v{VKD}, 4, v{L_}")
    def kdma(ch_sgpr_off, buf):
        for c in range(4):
            a(f"s_sub_u32 s{sT0}, s{ch_sgpr_off}, {2*c}")
            a(f"s_add_u32 m0, s{sLB}, {buf*KC_BYTES + c*KC_PITCH}")
            a("s_nop 0")
            for it in range(4):
                a(f"buffer_load_dwordx4 v{VKD}, s[{sK}:{sK+3}], s{sT0} offen offset:{it*1024} lds"); a.vm_issue("k")
            a(f"s_add_u32 m0, s{sLB}, {buf*KC_BYTES + c*KC_PITCH + 4096}")
            a(f"s_add_u32 s{sT0}, s{sT0}, 4096")
            a("s_mov_b64 exec, 15")
            a(f"buffer_load_dwordx4 v{VKD}, s[{sK}:{sK+3}], s{sT0} offen lds"); a.vm_issue("k")
            a("s_mov_b64 exec, -1")
    def uload(ch_off):
        for it in range(4):
            a(f"buffer_load_dwordx4 {vr(UPF+4*it,4)}, v{VKD}, s[{sU}:{sU+3}], s{ch_off} offen offset:{it*1024}"); a.vm_issue("u")
    a(f"s_mul_i32 s{sKO}, s{sCH}, {KREV_PITCH}\ns_add_u32 s{sKO}, s{sKO}, 16")
    a(f"s_lshl_b32 s{sT1}, s{sCH}, 12")
    uload(sT1)
    kdma(sKO, 0)
    stamp(a, stamps)
    a(f"v_and_b32 v{T}, 3, v{L_}")
    a(f"v_mul_u32_u24 v{VA}, {KC_PITCH}, v{T}")
    a(f"v_lshrrev_b32 v{T}, 5, v{L_}")
    a(f"v_lshlrev_b32 v{T}, 5, v{T}")
    a(f"v_sub_u32 v{VA}, v{VA}, v{T}")
    a(f"v_bfe_u32 v{T+1}, v{L_}, 4, 1")
    a(f"v_lshlrev_b32 v{T+1}, 4, v{T+1}")
    a(f"v_add_u32 v{VA}, v{VA}, v{T+1}")
    a(f"v_and_b32 v{T+2}, 12, v{L_}")
    a(f"v_lshlrev_b32 v{T+2}, 1, v{T+2}")
    a(f"v_sub_u32 v{VA}, v{VA}, v{T+2}")
    a(f"v_add_u32 v{VA}, {4096 - 64*63 + 64*7}, v{VA}")
    a(f"v_add_u32 v{VA}, s{sLB}, v{VA}")
    a(f"v_and_b32 v{T+2}, 15, v{L_}")
    a(f"v_lshlrev_b32 v{VB}, 5, v{T+2}")
    a(f"v_sub_u32 v{VB}, v{VB}, v{T}")
    a(f"v_add_u32 v{VB}, v{VB}, v{T+1}")
    a(f"v_add_u32 v{VB}, {U_OFF + 512}, v{VB}")
    a(f"v_add_u32 v{VB}, s{sLB}, v{VB}")
    a(f"v_add_u32 v{VUO}, {U_OFF + 512}, v{VKD}")
    a(f"v_add_u32 v{VUO}, s{sLB}, v{VUO}")
    a(f"v_subrev_u32 v{VUZ}, 512, v{VUO}")
    for i in range(4): a(f"v_mov_b32 v{PKR+i}, 0")
    a("s_mov_b32 exec_hi, 0")
    a(f"ds_write_b128 v{VUZ}, {vr(PKR,4)}")
    a("s_mov_b64 exec, -1")
    a(f"v_lshlrev_b32 v{VYO}, 5, v{T+2}")
    a(f"v_lshrrev_b32 v{T+3}, 4, v{L_}")
    a(f"v_lshlrev_b32 v{T+3}, 3, v{T+3}")
    a(f"v_add_u32 v{VYO}, v{VYO}, v{T+3}")
    for chn in range(3):
        buf = chn & 1
        a.wait(vm=lambda t: t in ("u", "k"))
        for it in range(4):
            a(f"ds_write_b128 v{VUO}, {vr(UPF+4*it,4)} offset:{it*1024}")
        a("s_waitcnt lgkmcnt(0)")
        a.lg = []
        if chn < 2:
            a(f"s_add_u32 s{sKO}, s{sKO}, {KREV_PITCH}")
            a(f"s_add_u32 s{sT1}, s{sCH}, {chn+1}\ns_lshl_b32 s{sT1}, s{sT1}, 12")
            uload(sT1)
            kdma(sKO, buf ^ 1)
        VAc, VBc = T, T+1
        a(f"v_add_u32 v{VAc}, {buf*KC_BYTES}, v{VA}")
        a(f"v_mov_b32 v{VBc}, v{VB}")
        def reads(rho, fb):
            r = []
            for x in range(8):
                r.append((f"ds_read_b64 {vr(FA+32*fb+4*x,2)}, v{VAc} offset:{512*(7-x)}", f"A{x}"))
                r.append((f"ds_read_b64 {vr(FA+32*fb+4*x+2,2)}, v{VAc} offset:{512*(7-x)+8}", f"A{x}"))
                r.append((f"ds_read_b128 {vr(FBc+32*fb+4*x,4)}, v{VBc} offset:{512*x}", f"B{x}"))
            return r
        for ins, tg in reads(0, 0)[:12]:
            a(ins); a.lg_issue(f"{tg}@0")
        pend = reads(0, 0)[12:]
        pend_rho = 0
        for rho in range(8):
            fb = rho & 1
            mf = [(n, x) for n in range(8) for x in range(n+1)]
            mf.sort(key=lambda p: (max(p[1], p[0]-p[1]), p[0]))
            nxt = []
            if rho < 7:
                nxt = reads(rho+1, fb ^ 1)
            queue = [(ins, f"{tg}@{rho}") for ins, tg in pend]
            pend = []
            addr_done = False
            nq = [(ins, f"{tg}@{rho+1}") for ins, tg in nxt[:12]]
            pend = nxt[12:]
            qi = 0
            allq = queue + ([("ADDR", None)] if rho < 7 else []) + nq
            for mi, (n, x) in enumerate(mf):
                need = {f"A{x}@{rho}", f"B{n-x}@{rho}"}
                while any((tg in need) for _, tg in allq[qi:]):
                    ins, tg = allq[qi]; qi += 1
                    if ins == "ADDR":
                        a(f"v_subrev_u32 v{VAc}, 64, v{VAc}\nv_subrev_u32 v{VBc}, 64, v{VBc}")
                    else:
                        if len(a.lg) >= 15: a.wait(lg=lambda t: t == a.lg[0])
                        a(ins); a.lg_issue(tg)
                a.wait(lg=lambda t: t in need)
                src = "0" if (rho == 0 and first_use(mf, mi)) else vr(ACCc+4*n,4)
                a(f"v_mfma_f32_16x16x32_bf16 {vr(ACCc+4*n,4)}, {vr(FA+32*fb+4*x,4)}, {vr(FBc+32*fb+4*(n-x),4)}, {src}")
                if qi < len(allq) and len(a.lg) < 15:
                    ins, tg = allq[qi]; qi += 1
                    if ins == "ADDR":
                        a(f"v_subrev_u32 v{VAc}, 64, v{VAc}\nv_subrev_u32 v{VBc}, 64, v{VBc}")
                    else:
                        a(ins); a.lg_issue(tg)
            while qi < len(allq):
                ins, tg = allq[qi]; qi += 1
                if ins == "ADDR":
                    a(f"v_subrev_u32 v{VAc}, 64, v{VAc}\nv_subrev_u32 v{VBc}, 64, v{VBc}")
                else:
                    if len(a.lg) >= 15: a.wait(lg=lambda t: t == a.lg[0])
                    a(ins); a.lg_issue(tg)
        a("s_nop 7")
        a(f"s_add_u32 s{sT0}, s{sCH}, {chn}\ns_lshl_b32 s{sT0}, s{sT0}, 12")
        for n in range(8):
            p = PKR + 2*(n & 1)
            a(f"v_cvt_pk_bf16_f32 v{p}, v{ACCc+4*n}, v{ACCc+4*n+1}")
            a(f"v_cvt_pk_bf16_f32 v{p+1}, v{ACCc+4*n+2}, v{ACCc+4*n+3}")
            a(f"buffer_store_dwordx2 {vr(p,2)}, v{VYO}, s[{sY}:{sY+3}], s{sT0} offen offset:{512*n}"); a.vm_issue("y")
            a("s_nop 0")
    a("s_waitcnt vmcnt(0)")

def first_use(mf, mi):
    n = mf[mi][0]
    return all(mf[j][0] != n for j in range(mi))

def gen_g(a, name, stamps):
    L_ = V_LANE
    X = 0
    W = 40
    WR = 112
    T = 150
    a(f"s_load_dwordx2 s[8:9], s[0:1], {KA_U}")
    a(f"s_load_dwordx2 s[12:13], s[0:1], {KA_GW}")
    a(f"s_lshl_b32 s50, s3, 1\ns_add_u32 s50, s50, s62\ns_sub_u32 s50, s50, 30\ns_lshl_b32 s50, s50, 7\ns_lshl_b32 s51, s{S_WAVE}, 5\ns_add_u32 s50, s50, s51")
    a(f"v_and_b32 v{T}, 7, v{L_}")
    a(f"v_lshlrev_b32 v{T}, 4, v{T}")
    a(f"v_lshrrev_b32 v{T+1}, 3, v{L_}")
    a(f"v_mul_u32_u24 v{T+2}, 1152, v{T+1}")
    a(f"v_add_u32 v{T+2}, v{T+2}, v{T}")
    a("s_waitcnt lgkmcnt(0)")
    a(f"s_mov_b32 s10, {X_BYTES}\ns_mov_b32 s11, 0x20000\ns_mov_b32 s14, 1152\ns_mov_b32 s15, 0x20000")
    a(f"s_add_u32 s16, s4, {WS_G}\ns_addc_u32 s17, s5, 0\ns_mov_b32 s18, 8192\ns_mov_b32 s19, 0x20000")
    for i in range(9):
        a(f"buffer_load_dwordx4 {vr(WR+4*i,4)}, v{T}, s[12:15], 0 offen offset:{i*128}")
    a(f"s_mul_i32 s52, s50, 1152")
    for ps in range(4):
        for i in range(9):
            a(f"buffer_load_dwordx4 {vr(X+4*i,4)}, v{T+2}, s[8:11], s52 offen offset:{i*128}")
        if ps == 0:
            a("s_waitcnt vmcnt(9)")
            for i in range(36):
                a(f"v_lshlrev_b32 v{W+2*i}, 16, v{WR+i}")
                a(f"v_and_b32 v{W+2*i+1}, 0xffff0000, v{WR+i}")
        a("s_waitcnt vmcnt(0)")
        a(f"v_mov_b32 v{T+3}, 0\nv_mov_b32 v{T+4}, 0")
        for i in range(36):
            a(f"v_lshlrev_b32 v{T+5}, 16, v{X+i}")
            a(f"v_and_b32 v{T+6}, 0xffff0000, v{X+i}")
            a(f"v_mul_f32 v{T+5}, v{T+5}, v{W+2*i}")
            a(f"v_mul_f32 v{T+6}, v{T+6}, v{W+2*i+1}")
            a(f"v_cvt_pk_bf16_f32 v{T+7}, v{T+5}, v{T+6}")
            a(f"v_lshlrev_b32 v{T+5}, 16, v{T+7}")
            a(f"v_and_b32 v{T+6}, 0xffff0000, v{T+7}")
            a(f"v_add_f32 v{T+3}, v{T+3}, v{T+5}")
            a(f"v_add_f32 v{T+4}, v{T+4}, v{T+6}")
        a(f"v_add_f32 v{T+3}, v{T+3}, v{T+4}")
        a("s_nop 1")
        a(f"v_add_f32_dpp v{T+3}, v{T+3}, v{T+3} quad_perm:[1,0,3,2] row_mask:0xf bank_mask:0xf")
        a("s_nop 1")
        a(f"v_add_f32_dpp v{T+3}, v{T+3}, v{T+3} quad_perm:[2,3,0,1] row_mask:0xf bank_mask:0xf")
        a("s_nop 1")
        a(f"v_add_f32_dpp v{T+3}, v{T+3}, v{T+3} row_half_mirror row_mask:0xf bank_mask:0xf")
        a(f"v_cvt_pk_bf16_f32 v{T+3}, v{T+3}, v{T+3}")
        a(f"v_and_b32 v{T+3}, 0xffff0000, v{T+3}")
        a(f"v_mul_f32 v{T+3}, 0x{f2u(-1.4426950408889634):08x}, v{T+3}")
        a(f"v_exp_f32 v{T+3}, v{T+3}")
        a("s_nop 0")
        a(f"v_add_f32 v{T+3}, 1.0, v{T+3}")
        a(f"v_rcp_f32 v{T+3}, v{T+3}")
        a("s_nop 0")
        a(f"v_cvt_pk_bf16_f32 v{T+3}, v{T+3}, v{T+3}")
        a(f"v_and_b32 v{T+3}, 0xffff0000, v{T+3}")
        a(f"v_lshlrev_b32 v{T+4}, 2, v{T+1}")
        a(f"s_lshl_b32 s53, s50, 2\ns_add_u32 s53, s53, {ps*32}")
        a(f"v_cmp_eq_u32 vcc, 0, v{T}")
        a("s_and_saveexec_b64 s[54:55], vcc")
        a(f"buffer_store_dword v{T+3}, v{T+4}, s[16:19], s53 offen")
        a("s_mov_b64 exec, s[54:55]")
        a(f"s_add_u32 s52, s52, {8*1152}")
    a("s_waitcnt vmcnt(0)")

def gen_k2(a, name, stamps=False):
    NST[0] = 0
    a(f".globl {name}\n.p2align 8\n.type {name},@function")
    a.label(name)
    a("s_cmp_ge_u32 s2, 256")
    a(f"s_cbranch_scc1 {name}_end")
    a(f"s_load_dwordx2 s[4:5], s[0:1], {KA_WS}")
    if stamps:
        for i in range(17): a(f"s_mov_b32 s{66+2*i}, -1")
    stamp(a, stamps)
    a(f"v_and_b32 v{V_LANE}, 63, v0")
    a(f"v_lshrrev_b32 v{V_T}, 6, v0")
    a("s_nop 0")
    a(f"v_readfirstlane_b32 s{S_WAVE}, v{V_T}")
    a("s_and_b32 s3, s2, 7\ns_lshr_b32 s62, s2, 3")
    a("s_cmp_ge_u32 s62, 30")
    a(f"s_cbranch_scc1 {name}_g")
    a("s_cmp_ge_u32 s62, 24")
    a(f"s_cbranch_scc1 {name}_conv")
    gen_gemm2(a, name, stamps)
    n_g2 = NST[0]
    a(f"s_branch {name}_fin")
    a.label(f"{name}_conv")
    a.vm = []; a.lg = []
    NST[0] = 1
    gen_conv(a, name, stamps)
    a(f"s_branch {name}_fin")
    a.label(f"{name}_g")
    a.vm = []; a.lg = []
    gen_g(a, name, stamps)
    a.label(f"{name}_fin")
    NST[0] = max(n_g2, NST[0])
    stamp(a, stamps)
    if stamps: stamp_store2(a, 1)
    a.label(f"{name}_end")
    a("s_endpgm")
```

```python
from asmlib import *
from layout import *
import k1
from k1 import stamp, stamp_store2, NST, f2u
V_LANE = 100
def gen_k3(a, name, stamps=False):
    NST[0] = 0
    k1.V_LANE_SAVE = k1.V_LANE
    a(f".globl {name}\n.p2align 8\n.type {name},@function")
    a.label(name)
    a("s_cmp_ge_u32 s2, 288")
    a(f"s_cbranch_scc1 {name}_end")
    a(f"s_load_dwordx2 s[4:5], s[0:1], {KA_WS}")
    a(f"s_load_dwordx2 s[8:9], s[0:1], {KA_U}")
    a(f"s_load_dwordx2 s[12:13], s[0:1], {KA_DSK}")
    a(f"s_load_dwordx2 s[16:17], s[0:1], {KA_OUT}")
    if stamps:
        for i in range(17): a(f"s_mov_b32 s{66+2*i}, -1")
    stamp(a, stamps)
    L_ = V_LANE
    a(f"v_and_b32 v{L_}, 63, v0")
    a(f"v_lshrrev_b32 v1, 6, v0")
    a("s_nop 0")
    a(f"v_readfirstlane_b32 s20, v1")
    a("s_lshl_b32 s21, s2, 2\ns_add_u32 s21, s21, s20")
    a("s_mul_i32 s22, s21, 3641\ns_lshr_b32 s22, s22, 16")
    a("s_mul_i32 s23, s22, 18\ns_sub_u32 s23, s21, s23")
    a(f"v_lshlrev_b32 v97, 4, v{L_}")
    a(f"v_and_b32 v98, 31, v{L_}")
    a(f"v_lshrrev_b32 v99, 5, v{L_}")
    a("v_lshlrev_b32 v101, 16, v99")
    a("v_lshlrev_b32 v102, 1, v98")
    a("v_add_u32 v101, v101, v102")
    a("s_lshl_b32 s24, s23, 17\ns_lshl_b32 s25, s22, 6\ns_add_u32 s24, s24, s25")
    a("v_mul_u32_u24 v103, 1152, v98")
    a("v_lshlrev_b32 v102, 5, v99")
    a("v_add_u32 v103, v103, v102")
    a(f"s_mul_i32 s26, s22, {32*1152}\ns_lshl_b32 s27, s23, 6\ns_add_u32 s26, s26, s27")
    a("v_lshlrev_b32 v104, 2, v98\ns_lshl_b32 s28, s22, 7")
    a("s_waitcnt lgkmcnt(0)")
    a(f"s_add_u32 s32, s4, {WS_PART}\ns_addc_u32 s33, s5, 0\ns_mov_b32 s34, {PART_BYTES}\ns_mov_b32 s35, 0x20000")
    a(f"s_add_u32 s36, s4, {WS_YT}\ns_addc_u32 s37, s5, 0\ns_mov_b32 s38, {UT_BYTES}\ns_mov_b32 s39, 0x20000")
    a(f"s_add_u32 s40, s4, {WS_G}\ns_addc_u32 s41, s5, 0\ns_mov_b32 s42, 8192\ns_mov_b32 s43, 0x20000")
    a(f"s_mov_b32 s10, {X_BYTES}\ns_mov_b32 s11, 0x20000\ns_mov_b32 s14, 1152\ns_mov_b32 s15, 0x20000\ns_mov_b32 s18, {X_BYTES}\ns_mov_b32 s19, 0x20000")
    a("s_lshl_b32 s29, s21, 12")
    for sk in range(4):
        if sk: a(f"s_add_u32 s29, s29, {64*18*4096}")
        for j in range(4):
            a(f"buffer_load_dwordx4 {vr(16*sk+4*j,4)}, v97, s[32:35], s29 offen offset:{j*1024}")
    for k in range(16):
        a(f"s_add_u32 s30, s24, {k*4096}")
        a(f"buffer_load_ushort v{64+k}, v101, s[36:39], s30 offen")
    a("buffer_load_dwordx4 v[80:83], v103, s[8:11], s26 offen")
    a("buffer_load_dwordx4 v[84:87], v103, s[8:11], s26 offen offset:16")
    a("buffer_load_dwordx4 v[88:91], v102, s[12:15], s27 offen")
    a("buffer_load_dwordx4 v[92:95], v102, s[12:15], s27 offen offset:16")
    a("buffer_load_dword v96, v104, s[40:43], s28 offen")
    stamp(a, stamps)
    a("s_waitcnt vmcnt(21)")
    for k in range(16):
        a(f"v_add_f32 v{k}, v{k}, v{16+k}")
        a(f"v_add_f32 v{32+k}, v{32+k}, v{48+k}")
    for k in range(16):
        a(f"v_add_f32 v{k}, v{k}, v{32+k}")
    a("s_waitcnt vmcnt(0)")
    a("v_sub_f32 v105, 1.0, v96")
    a("v_cvt_pk_bf16_f32 v105, v105, v105\nv_and_b32 v105, 0xffff0000, v105")
    for k in range(0, 16, 2):
        q = k // 2
        a(f"v_lshlrev_b32 v106, 16, v{80+q}\nv_and_b32 v107, 0xffff0000, v{80+q}")
        a(f"v_lshlrev_b32 v108, 16, v{88+q}\nv_and_b32 v109, 0xffff0000, v{88+q}")
        a("v_mul_f32 v106, v106, v108\nv_mul_f32 v107, v107, v109")
        a("v_cvt_pk_bf16_f32 v106, v106, v107")
        a("v_and_b32 v107, 0xffff0000, v106\nv_lshlrev_b32 v106, 16, v106")
        a(f"v_lshlrev_b32 v108, 16, v{64+k}\nv_lshlrev_b32 v109, 16, v{64+k+1}")
        a("v_add_f32 v106, v106, v108\nv_add_f32 v107, v107, v109")
        a("v_cvt_pk_bf16_f32 v106, v106, v107")
        a("v_and_b32 v107, 0xffff0000, v106\nv_lshlrev_b32 v106, 16, v106")
        a("v_mul_f32 v106, v106, v96\nv_mul_f32 v107, v107, v96")
        a("v_cvt_pk_bf16_f32 v106, v106, v107")
        a("v_and_b32 v107, 0xffff0000, v106\nv_lshlrev_b32 v106, 16, v106")
        a(f"v_cvt_pk_bf16_f32 v108, v{k}, v{k+1}")
        a("v_and_b32 v109, 0xffff0000, v108\nv_lshlrev_b32 v108, 16, v108")
        a("v_mul_f32 v108, v108, v105\nv_mul_f32 v109, v109, v105")
        a("v_cvt_pk_bf16_f32 v108, v108, v109")
        a("v_and_b32 v109, 0xffff0000, v108\nv_lshlrev_b32 v108, 16, v108")
        a("v_add_f32 v106, v106, v108\nv_add_f32 v107, v107, v109")
        a(f"v_cvt_pk_bf16_f32 v{16+q}, v106, v107")
    a("buffer_store_dwordx4 v[16:19], v103, s[16:19], s26 offen")
    a("buffer_store_dwordx4 v[20:23], v103, s[16:19], s26 offen offset:16")
    a("s_waitcnt vmcnt(0)")
    stamp(a, stamps)
    if stamps:
        sv = k1.V_LANE
        k1.V_LANE = V_LANE
        import types
        n = NST[0]
        a("s_waitcnt lgkmcnt(0)")
        a(f"s_add_u32 s56, s4, {0x3100000 + 2*0x40000}\ns_addc_u32 s57, s5, 0\ns_mov_b32 s58, 0x40000\ns_mov_b32 s59, 0x20000")
        a(f"s_lshl_b32 s50, s2, 2\ns_add_u32 s50, s50, s20\ns_lshl_b32 s50, s50, 7")
        a("v_mov_b32 v110, s50")
        a(f"v_cmp_eq_u32 vcc, 0, v{V_LANE}")
        a("s_and_saveexec_b64 s[52:53], vcc")
        for i in range(n):
            a(f"v_mov_b32 v111, s{66+2*i}")
            a(f"buffer_store_dword v111, v110, s[56:59], 0 offen offset:{4*i}")
        a("s_mov_b64 exec, s[52:53]")
        k1.V_LANE = sv
    a.label(f"{name}_end")
    a("s_endpgm")
assert all((t*3641)>>16 == t//18 for t in range(1152))
```

```python
from asmlib import *
from layout import *
import struct, math
def f2u(x): return struct.unpack("<I", struct.pack("<f", x))[0]
LOG2E = 1.4426950408889634
INV2PI = 0.15915494309189535

HI = list(range(8)) + [256, 258, 260, 262] + [512, 516, 768, 772] + [1024, 1280, 1536, 1792, 2048]
PITCH = 272
A_BYTES = 21 * PITCH
TB_OFF = 5760
F_OFF = TB_OFF + 32 * PITCH
KG_LDS = F_OFF + 24*32*2 + 64
KG_REGION = 16384

def bf16_rne_int(l):
    import numpy as np
    f = np.float32(l); u = f.view(np.uint32)
    u = (int(u) + 0x7fff + ((int(u) >> 16) & 1)) & 0xffff0000
    return int(np.uint32(u).view(np.float32))

def kmap_table():
    out = []
    ZERO = 21*32
    for y0 in range(2080):
        l = 2048 - y0
        if l < 0 or l > 2047:
            out.append(ZERO*2); continue
        p = bf16_rne_int(l)
        if p < 256: hi, lo = p & 7, p >> 3
        elif p < 512: h = p - 256; hi, lo = 8 + ((h & 7) >> 1), h >> 3
        elif p < 1024: h = p - 512; hi, lo = 12 + 2*(h >> 8) + ((h & 7) >> 2), (h & 255) >> 3
        elif p < 2048: h = p - 1024; hi, lo = 16 + (h >> 8), (h & 255) >> 3
        else: hi, lo = 20, 0
        assert HI[hi] + 8*lo == p
        out.append((hi*32 + lo)*2)
    return out

def emit_kmap(a, label):
    t = kmap_table()
    a(".p2align 4")
    a.label(label)
    for i in range(0, 2080, 8):
        a(".short " + ", ".join(str(x) for x in t[i:i+8]))

def kgen(a, VB, s_ch, s_lds, v_lane, S, label_map):
    sP = S
    sR = S + 8
    sL = S + 12
    sT = S + 14
    sM = S + 20
    v = lambda i: VB + i
    LAR, AIM, CR, CI = [v(i) for i in range(0, 8, 2)]
    LDT = v(8); OFF = v(9); DT = v(10); WA = v(11); WB = v(12); RA = v(13); RB = v(14)
    ARE, AIR = v(15), v(16)
    Z1, Z2, Z4, Z8, Z256 = [v(18 + 2*i) for i in range(5)]
    C0 = v(28); G = v(30); G2 = v(32); T1 = v(34); T2 = v(35); PK = v(36); PK2 = v(37); TH = v(38); EE = v(39)
    ACC = v(40)
    FA = v(56); FB = v(64)
    MAP = v(72)
    GA = v(92)
    OUT = v(100)
    a.c("---- kgen")
    a(f"s_load_dwordx8 s[{sP}:{sP+7}], s[0:1], {KA_LAR}")
    a(f"s_load_dwordx2 s[{sL}:{sL+1}], s[0:1], {KA_LDT}")
    a(f"s_getpc_b64 s[{sM}:{sM+1}]")
    lab = a.newlabel("kg_pc")
    a.label(lab)
    a(f"s_add_u32 s{sM}, s{sM}, {label_map}-{lab}")
    a(f"s_addc_u32 s{sM+1}, s{sM+1}, 0")
    a(f"s_lshl_b32 s{sT}, s{s_ch}, 8")
    a(f"v_lshlrev_b32 v{OFF}, 1, v{v_lane}")
    a(f"v_lshlrev_b32 v{MAP}, 4, v{v_lane}")
    a("s_waitcnt lgkmcnt(0)")
    a(f"s_mov_b32 s{sR+2}, {576*128*2}\ns_mov_b32 s{sR+3}, 0x20000")
    for k, dst in enumerate((LAR, AIM, CR, CI)):
        a(f"s_mov_b32 s{sR}, s{sP+2*k}\ns_mov_b32 s{sR+1}, s{sP+2*k+1}")
        a(f"buffer_load_ushort v{dst}, v{OFF}, s[{sR}:{sR+3}], s{sT} offen")
        a(f"buffer_load_ushort v{dst+1}, v{OFF}, s[{sR}:{sR+3}], s{sT} offen offset:128")
    a(f"s_mov_b32 s{sR}, s{sL}\ns_mov_b32 s{sR+1}, s{sL+1}\ns_mov_b32 s{sR+2}, {576*2}")
    a(f"s_lshl_b32 s{sT+1}, s{s_ch}, 1")
    a(f"v_mov_b32 v{T1}, 0")
    a(f"buffer_load_ushort v{LDT}, v{T1}, s[{sR}:{sR+3}], s{sT+1} offen")
    for it in range(4):
        a(f"global_load_dwordx4 {vr(MAP+4+4*it,4)}, v{MAP}, s[{sM}:{sM+1}] offset:{it*1024}")
    a(f"v_and_b32 v{T2}, 3, v{v_lane}")
    a(f"v_lshlrev_b32 v{T2}, 4, v{T2}")
    a(f"v_add_u32 v{T2}, 4096, v{T2}")
    a(f"global_load_dwordx4 {vr(GA,4)}, v{T2}, s[{sM}:{sM+1}]")
    a(f"v_lshlrev_b32 v{WA}, 2, v{v_lane}")
    a(f"v_add_u32 v{WA}, s{s_lds}, v{WA}")
    a(f"v_and_b32 v{RA}, 31, v{v_lane}")
    a(f"v_mul_u32_u24 v{RA}, {PITCH}, v{RA}")
    a(f"v_lshrrev_b32 v{RB}, 5, v{v_lane}")
    a(f"v_lshlrev_b32 v{RB}, 4, v{RB}")
    a(f"v_add_u32 v{RA}, v{RA}, v{RB}")
    a(f"v_add_u32 v{RA}, s{s_lds}, v{RA}")
    a("s_waitcnt vmcnt(5)")
    a(f"v_lshlrev_b32 v{LDT}, 16, v{LDT}")
    a(f"v_mul_f32 v{DT}, 0x{f2u(LOG2E):08x}, v{LDT}")
    a(f"v_exp_f32 v{DT}, v{DT}")
    a("s_nop 0")
    a(f"v_cvt_pk_bf16_f32 v{DT}, v{DT}, v{DT}")
    a(f"v_and_b32 v{DT}, 0xffff0000, v{DT}")
    def cmul(D, A_, B_):
        a(f"v_mul_f32 v{T1}, v{A_}, v{B_}")
        a(f"v_mul_f32 v{T2}, v{A_}, v{B_+1}")
        a(f"v_fma_f32 v{D}, -v{A_+1}, v{B_+1}, v{T1}")
        a(f"v_fma_f32 v{D+1}, v{A_+1}, v{B_}, v{T2}")
    def putA(row, X):
        a(f"v_cvt_pk_bf16_f32 v{PK}, v{X}, -v{X+1}")
        a(f"ds_write_b32 v{WA}, v{PK} offset:{row*PITCH}")
    def putB(row, X):
        a(f"v_cvt_pk_bf16_f32 v{PK2}, v{X}, v{X+1}")
        a(f"ds_write_b32 v{WA}, v{PK2} offset:{TB_OFF + row*PITCH}")
    def zdirect(Z, p):
        a(f"v_mul_f32 v{EE}, {fconst(p)}, v{ARE}")
        a(f"v_mul_f32 v{TH}, {fconst(p)}, v{AIR}")
        a(f"v_exp_f32 v{EE}, v{EE}")
        a(f"v_fract_f32 v{TH}, v{TH}")
        a(f"v_cos_f32 v{Z}, v{TH}")
        a(f"v_sin_f32 v{Z+1}, v{TH}")
        a("s_nop 0")
        a(f"v_mul_f32 v{Z}, v{Z}, v{EE}")
        a(f"v_mul_f32 v{Z+1}, v{Z+1}, v{EE}")
    def fconst(p):
        return {1: "1.0", 2: "2.0", 4: "4.0"}.get(p, f"0x{f2u(float(p)):08x}")
    for ps in range(2):
        a(f"v_lshlrev_b32 v{ARE}, 16, v{LAR+ps}")
        a(f"v_mul_f32 v{ARE}, 0x{f2u(LOG2E):08x}, v{ARE}")
        a(f"v_exp_f32 v{ARE}, v{ARE}")
        a(f"v_lshlrev_b32 v{AIR}, 16, v{AIM+ps}")
        a(f"v_cvt_pk_bf16_f32 v{ARE}, v{ARE}, v{ARE}")
        a(f"v_and_b32 v{ARE}, 0xffff0000, v{ARE}")
        a(f"v_mul_f32 v{ARE}, v{ARE}, v{DT}")
        a(f"v_mul_f32 v{ARE}, 0x{f2u(-LOG2E):08x}, v{ARE}")
        a(f"v_mul_f32 v{AIR}, v{AIR}, v{DT}")
        a(f"v_mul_f32 v{AIR}, 0x{f2u(INV2PI):08x}, v{AIR}")
        a(f"v_lshlrev_b32 v{C0}, 16, v{CR+ps}")
        a(f"v_lshlrev_b32 v{C0+1}, 16, v{CI+ps}")
        a(f"v_add_f32 v{TH}, v{DT}, v{DT}")
        a(f"v_mul_f32 v{C0}, v{C0}, v{TH}")
        a(f"v_mul_f32 v{C0+1}, v{C0+1}, v{TH}")
        for Z, p in ((Z1, 1), (Z2, 2), (Z4, 4), (Z8, 8), (Z256, 256)):
            zdirect(Z, p)
        if ps == 1:
            a("s_waitcnt lgkmcnt(0)")
        putA(0, C0)
        cmul(G, C0, Z1); putA(1, G)
        for h in range(2, 8):
            cmul(G, G, Z1); putA(h, G)
        cmul(G2, C0, Z256); putA(8, G2)
        cmul(G, G2, Z2); putA(9, G)
        cmul(G, G, Z2); putA(10, G)
        cmul(G, G, Z2); putA(11, G)
        cmul(G2, G2, Z256); putA(12, G2)
        cmul(G, G2, Z4); putA(13, G)
        cmul(G2, G2, Z256); putA(14, G2)
        cmul(G, G2, Z4); putA(15, G)
        for r in range(16, 21):
            cmul(G2, G2, Z256); putA(r, G2)
        a(f"v_mov_b32 v{G}, 1.0\nv_mov_b32 v{G+1}, 0")
        putB(0, G)
        putB(1, Z8)
        cmul(G, Z8, Z8); putB(2, G)
        for j in range(3, 32):
            cmul(G, G, Z8); putB(j, G)
        a("s_waitcnt lgkmcnt(0)")
        for ks in range(8):
            b = ks & 1
            a(f"ds_read_b128 {vr(FA+4*b,4)}, v{RA} offset:{ks*32}")
            a(f"ds_read_b128 {vr(FB+4*b,4)}, v{RA} offset:{TB_OFF + ks*32}")
            if ks > 0:
                a("s_waitcnt lgkmcnt(2)")
                pb = (ks-1) & 1
                src = "0" if (ps == 0 and ks == 1) else vr(ACC,16)
                a(f"v_mfma_f32_32x32x16_bf16 {vr(ACC,16)}, {vr(FA+4*pb,4)}, {vr(FB+4*pb,4)}, {src}")
        a("s_waitcnt lgkmcnt(0)")
        a(f"v_mfma_f32_32x32x16_bf16 {vr(ACC,16)}, {vr(FA+4,4)}, {vr(FB+4,4)}, {vr(ACC,16)}")
    a(f"v_and_b32 v{T1}, 31, v{v_lane}")
    a(f"v_lshlrev_b32 v{T1}, 1, v{T1}")
    a(f"v_lshrrev_b32 v{T2}, 5, v{v_lane}")
    a(f"v_lshlrev_b32 v{T2}, 8, v{T2}")
    a(f"v_add_u32 v{T1}, v{T1}, v{T2}")
    a(f"v_add_u32 v{T1}, s{s_lds}, v{T1}")
    a("s_nop 7\ns_nop 3")
    for j in range(3):
        for i in range(0, 4, 2):
            a(f"v_cvt_pk_bf16_f32 v{PK}, v{ACC+4*j+i}, v{ACC+4*j+i+1}")
            a(f"ds_write_b16 v{T1}, v{PK} offset:{F_OFF + (8*j+i)*64}")
            a(f"ds_write_b16_d16_hi v{T1}, v{PK} offset:{F_OFF + (8*j+i+1)*64}")
    a("s_waitcnt lgkmcnt(0)")
    a(f"v_mov_b32 v{PK}, 0")
    a(f"v_mov_b32 v{T2}, s{s_lds}")
    a(f"ds_write_b16 v{T2}, v{PK} offset:{F_OFF + 21*64}")
    a("s_waitcnt vmcnt(0) lgkmcnt(0)")
    a(f"s_add_u32 s{sR}, s4, {WS_KREV}\ns_addc_u32 s{sR+1}, s5, 0\ns_mov_b32 s{sR+2}, {KREV_BYTES}\ns_mov_b32 s{sR+3}, 0x20000")
    a(f"s_mul_i32 s{sT}, s{s_ch}, {KREV_PITCH}")
    a(f"s_add_u32 s{sT+1}, s{s_lds}, {F_OFF}")
    TM = v(104)
    for i in range(4): a(f"v_mov_b32 v{TM+i}, v{GA+i}")
    for it in range(5):
        src = MAP + 4 + 4*it if it < 4 else TM
        for i in range(4):
            a(f"v_and_b32 v{GA+2*i}, 0xffff, v{src+i}")
            a(f"v_lshrrev_b32 v{GA+2*i+1}, 16, v{src+i}")
        for i in range(8):
            a(f"v_add_u32 v{GA+i}, s{sT+1}, v{GA+i}")
        for i in range(4):
            a(f"ds_read_u16 v{GA+2*i}, v{GA+2*i}")
            a(f"ds_read_u16_d16_hi v{GA+2*i+1}, v{GA+2*i+1}")
        a("s_waitcnt lgkmcnt(0)")
        for i in range(4):
            a(f"v_and_b32 v{GA+2*i+1}, 0xffff0000, v{GA+2*i+1}")
            a(f"v_or_b32 v{OUT+i}, v{GA+2*i}, v{GA+2*i+1}")
        if it < 4:
            a(f"buffer_store_dwordx4 {vr(OUT,4)}, v{MAP}, s[{sR}:{sR+3}], s{sT} offen offset:{it*1024}")
        else:
            a(f"v_cmp_gt_u32 vcc, 4, v{v_lane}")
            a(f"s_and_saveexec_b64 s[{sT+2}:{sT+3}], vcc")
            a(f"s_add_u32 s{sT}, s{sT}, 4096")
            a(f"buffer_store_dwordx4 {vr(OUT,4)}, v{MAP}, s[{sR}:{sR+3}], s{sT} offen")
            a(f"s_mov_b64 exec, s[{sT+2}:{sT+3}]")
        a("s_nop 1")

def ut_task(a, VB, s_task, s_lds, v_lane, S):
    sR = S; sT = S + 4
    v = lambda i: VB + i
    VO = v(0); RA = v(1); SO = v(2); T1 = v(3); T2 = v(4); D = v(8)
    a.c("---- uT task")
    a(f"s_mul_i32 s{sT}, s{s_task}, 57\ns_lshr_b32 s{sT}, s{sT}, 9")
    a(f"s_mul_i32 s{sT+1}, s{sT}, 9\ns_sub_u32 s{sT+1}, s{s_task}, s{sT+1}")
    a(f"s_mul_i32 s{sT+2}, s{sT}, {128*1152}")
    a(f"s_lshl_b32 s{sT+3}, s{sT+1}, 7")
    a(f"s_add_u32 s{sT+2}, s{sT+2}, s{sT+3}")
    a(f"v_lshrrev_b32 v{T1}, 3, v{v_lane}")
    a(f"v_mul_u32_u24 v{VO}, 1152, v{T1}")
    a(f"v_and_b32 v{T2}, 7, v{v_lane}")
    a(f"v_lshlrev_b32 v{T2}, 4, v{T2}")
    a(f"v_add_u32 v{VO}, v{VO}, v{T2}")
    for i in range(16):
        if i % 4 == 0:
            a(f"s_add_u32 m0, s{s_lds}, {(i//4)*4096}")
        a(f"s_add_u32 s{sT+3}, s{sT+2}, {i*9216 - (i%4)*1024}")
        a(f"buffer_load_dwordx4 v{VO}, s[8:11], s{sT+3} offen offset:{(i%4)*1024} lds")
    a(f"v_lshrrev_b32 v{T1}, 4, v{v_lane}")
    a(f"v_lshlrev_b32 v{T1}, 3, v{T1}")
    a(f"v_bfe_u32 v{T2}, v{v_lane}, 2, 2")
    a(f"v_add_u32 v{T1}, v{T1}, v{T2}")
    a(f"v_lshlrev_b32 v{T1}, 7, v{T1}")
    a(f"v_and_b32 v{T2}, 3, v{v_lane}")
    a(f"v_lshlrev_b32 v{T2}, 3, v{T2}")
    a(f"v_add_u32 v{RA}, v{T1}, v{T2}")
    a(f"v_add_u32 v{RA}, s{s_lds}, v{RA}")
    a(f"v_and_b32 v{T1}, 15, v{v_lane}")
    a(f"v_lshlrev_b32 v{T1}, 12, v{T1}")
    a(f"v_lshrrev_b32 v{T2}, 4, v{v_lane}")
    a(f"v_lshlrev_b32 v{T2}, 4, v{T2}")
    a(f"v_add_u32 v{SO}, v{T1}, v{T2}")
    a(f"s_add_u32 s{sR}, s4, {WS_UT}\ns_addc_u32 s{sR+1}, s5, 0\ns_mov_b32 s{sR+2}, {UT_BYTES}\ns_mov_b32 s{sR+3}, 0x20000")
    a(f"s_lshl_b32 s{sT+1}, s{sT+1}, 18\ns_lshl_b32 s{sT}, s{sT}, 8\ns_add_u32 s{sT}, s{sT}, s{sT+1}")
    a("s_waitcnt vmcnt(0)")
    for cg in range(4):
        for tb in range(4):
            d = D + 4*tb
            a(f"ds_read_b64_tr_b16 {vr(d,2)}, v{RA} offset:{tb*4096 + cg*32}")
            a(f"ds_read_b64_tr_b16 {vr(d+2,2)}, v{RA} offset:{tb*4096 + cg*32 + 512}")
        a("s_waitcnt lgkmcnt(0)")
        a(f"s_add_u32 s{sT+3}, s{sT}, {cg*16*4096}")
        for tb in range(4):
            a(f"buffer_store_dwordx4 {vr(D+4*tb,4)}, v{SO}, s[{sR}:{sR+3}], s{sT+3} offen offset:{tb*64}")
        a("s_nop 1")
```

```python
L = 2048; D = 576; F = 4608; N = 128
WS_H    = 0
H_BYTES = 64*288*1024
WS_PART = 0x1200000
PART_BYTES = 4*64*18*4096
WS_KREV = 0x2400000
KREV_PITCH = 4160
KREV_BYTES = 576*KREV_PITCH
WS_UT   = 0x2700000
UT_BYTES = 576*4096
WS_YT   = 0x2A00000
WS_G    = 0x2D00000
X_BYTES = 2048*576*2
W_BYTES = 576*4608*2
KA_U, KA_LAR, KA_AIM, KA_CR, KA_CI, KA_LDT, KA_DSK, KA_BX, KA_WG, KA_WU, KA_WD, KA_GW, KA_OUT, KA_DBG, KA_WS = [8*i for i in range(15)]
```

```python
import sys, os
sys.path.insert(0, os.path.dirname(__file__))
from asmlib import *
from layout import *
import k1, kgen

def k1_tail(a):
    name = "k1_kernel"
    a.wait_all()
    a("s_barrier")
    a(f"s_cmp_eq_u32 s{k1.S_NU}, 4")
    a(f"s_cbranch_scc0 {name}_tail_done")
    a(f"s_lshl_b32 s54, s{k1.S_SHORT}, 2\ns_add_u32 s54, s54, s{k1.S_WAVE}")
    a(f"s_mul_i32 s55, s{k1.S_WAVE}, {kgen.KG_REGION*2}")
    a("s_mov_b32 s56, s54")
    a.label(f"{name}_kg_again")
    kgen.kgen(a, 0, 56, 55, k1.V_LANE, 32, "kmap_table")
    a("s_cmp_lt_u32 s56, 64")
    a(f"s_cbranch_scc0 {name}_kg_done")
    a("s_add_u32 s56, s56, 512")
    a("s_waitcnt vmcnt(0) lgkmcnt(0)")
    a(f"s_branch {name}_kg_again")
    a.label(f"{name}_kg_done")
    a("s_cmp_lt_u32 s54, 64")
    a(f"s_cbranch_scc1 {name}_tail_done")
    a("s_cmp_ge_u32 s54, 208")
    a(f"s_cbranch_scc1 {name}_tail_done")
    a("s_sub_u32 s57, s54, 64")
    a("s_waitcnt vmcnt(0) lgkmcnt(0)")
    kgen.ut_task(a, 0, 57, 55, k1.V_LANE, 32)
    a.label(f"{name}_tail_done")

def build(path, kernels=("k1",), stamps=False):
    a = Asm()
    hdr = open("gated_mix__ssm_conv_s4d__geglu_ffn__prompt.s.ref").read().split("\n")
    for l in hdr:
        if l.startswith("; Kernarg") or l.startswith(";   offset"):
            a.lines.append(l)
    if "k1" in kernels: a.lines.append("; @launch kernel=k1_kernel grid=(256,1,1) block=(256,1,1) lds=163840")
    if "k2" in kernels: a.lines.append("; @launch kernel=k2_kernel grid=(256,1,1) block=(256,1,1) lds=163840")
    if "k3" in kernels: a.lines.append("; @launch kernel=k3_kernel grid=(288,1,1) block=(256,1,1) lds=0")
    a.lines.append('.amdgcn_target "amdgcn-amd-amdhsa--gfx950"')
    a.lines.append(".text")
    descs = []
    if "k1" in kernels:
        k1.gen_k1(a, "k1_kernel", stamps=stamps, tail=k1_tail)
        descs.append(kernel_desc("k1_kernel", 512, 102, 256))
    if "k2" in kernels:
        import k2
        a.vm = []; a.lg = []
        k2.gen_k2(a, "k2_kernel", stamps=stamps)
        descs.append(kernel_desc("k2_kernel", 512, 102, 256))
    if "k3" in kernels:
        import k3
        a.vm = []; a.lg = []
        k3.gen_k3(a, "k3_kernel", stamps=stamps)
        descs.append(kernel_desc("k3_kernel", 128, 102, 128))
    if "k1" in kernels:
        kgen.emit_kmap(a, "kmap_table")
    for d in descs: a.lines.append(d)
    open(path, "w").write(a.text())
    print("wrote", path, "lines", len(a.lines))

if __name__ == "__main__":
    out = sys.argv[1]
    ks = sys.argv[2].split(",")
    build(out, ks, stamps=(len(sys.argv) > 3 and sys.argv[3] == "stamps"))
```

```python
from asmlib import *
from layout import *
import kgen
import os, struct
OPT = set(os.environ.get("K1OPT", "").split(","))
def f2u(x): return struct.unpack("<I", struct.pack("<f", x))[0]

A_SET = 0
P_SET = 64
WF = 128
GT = 152
HP = 160
V_TR = 168
V_WO = 171
V_XO = 175
V_HOFF = 179
V_C2 = 180
V_C1 = 181
V_LANE = 182
V_TRN = 183
V_T = 186
XV = 224
V_XR = P_SET

S_X, S_W, S_H = 8, 12, 16
S_WAVE, S_MT, S_FC, S_TR, S_CNT, S_M0W, S_XB, S_HO0, S_HO1, S_HOH, S_HX, S_WJ = range(20, 32)
S_WC = 32
S_XC = 41
S_KG = 68

def XF(s, tt):
    if s < 32: return ar(8*s + 4*tt, 4)
    return vr(XV + 8*(s-32) + 4*tt, 4)

XI = [2, 4, 6, 8, 0, 2, 4, 6, 8]
SG = [3, 5, 7, 9, 1, 3, 5, 7, 9]

GELU_C1 = -2.0 * 0.7978845608028654 * 1.4426950408889634
GELU_C2 = GELU_C1 * 0.044715
HSTORE_FLAGS = os.environ.get("HFLAGS", "sc1")

NST = [0]
def streg(i):
    assert i < 16
    return 88 + 2*i if i < 6 else 68 + 2*(i-6)
def stamp(a, on):
    if not on: return
    i = NST[0]; NST[0] += 1
    a(f"s_memrealtime s[{streg(i)}:{streg(i)+1}]")
def stamp_cyc(a, on):
    if not on: return
    i = NST[0]; NST[0] += 1
    a(f"s_memtime s[{streg(i)}:{streg(i)+1}]")
def stamp_init(a, on):
    if not on: return
    for i in range(6): a(f"s_mov_b32 s{streg(i)}, -1")
def stamp_init2(a, on):
    if not on: return
    for i in range(6, 16): a(f"s_mov_b32 s{streg(i)}, -1")
def stamp_store2(a, kidx=0, vlane=None, vt=200, swave=None):
    n = NST[0]
    vlane = V_LANE if vlane is None else vlane
    swave = S_WAVE if swave is None else swave
    a("s_waitcnt lgkmcnt(0)")
    a(f"s_add_u32 s56, s4, {0x3100000 + kidx*0x40000}\ns_addc_u32 s57, s5, 0\ns_mov_b32 s58, 0x40000\ns_mov_b32 s59, 0x20000")
    a(f"s_lshl_b32 s50, s2, 2\ns_add_u32 s50, s50, s{swave}\ns_lshl_b32 s50, s50, 7")
    a(f"v_mov_b32 v{vt}, s50")
    a(f"v_cmp_eq_u32 vcc, 0, v{vlane}")
    a("s_and_saveexec_b64 s[52:53], vcc")
    for i in range(n):
        a(f"v_mov_b32 v{vt+1}, s{streg(i)}")
        a(f"buffer_store_dword v{vt+1}, v{vt}, s[56:59], 0 offen offset:{4*i}")
    a("s_mov_b64 exec, s[52:53]")

def dma_w(c, slot, i, tag):
    return [((slot, f"buffer_load_dwordx4 v{V_WO+i}, s[{S_W}:{S_W+3}], s{S_WC+c} offen offset:{i*1024} lds"), 8 + (8 if i == 0 else 0), tag, None)]
def dma_x(c, slot, i, tag):
    return [((slot, f"buffer_load_dwordx4 v{V_XO+i}, s[{S_X}:{S_X+3}], s{S_XC+c} offen offset:{i*1024} lds"), 8 + (8 if i == 0 else 0), tag, None)]
class Emit:
    def __init__(self, a):
        self.a = a; self.m0 = None
    def __call__(self, items):
        a = self.a
        for (ins, cost, vt, lt) in items:
            if isinstance(ins, tuple):
                slot, txt = ins
                if self.m0 != slot:
                    a(f"s_add_u32 m0, s{S_M0W}, {slot*16384}"); self.m0 = slot
                    a("s_nop 0")
                a(txt)
            else:
                a(ins)
            if vt: a.vm_issue(vt)
            if lt: a.lg_issue(lt)
def adv_w():
    return [(f"s_add_u32 s{S_W}, s{S_W}, 128", 4, None, None), (f"s_addc_u32 s{S_W+1}, s{S_W+1}, 0", 4, None, None),
            (f"s_sub_u32 s{S_W+2}, s{S_W+2}, 128", 4, None, None)]

def wread(s, k, slot, areg=None):
    mat, rd = k >> 1, k & 1
    sp = s % 4
    off = slot*16384 + mat*8192 + sp*2048 + rd*512
    win, off = off >> 16, off & 0xffff
    dst = WF + 8*(s % 3) + 4*mat + 2*rd
    r = V_TR + win if areg is None else areg
    return f"ds_read_b64_tr_b16 {vr(dst,2)}, v{r} offset:{off}"

def xread(s, tt):
    c = s // 4; sp = s % 4
    off = XI[c]*16384 + tt*4096
    win, off = off >> 16, off & 0xffff
    return f"ds_read_b128 {XF(s,tt)}, v{V_XR + 4*win + sp} offset:{off}"

def mfma(s, m, first_c0, last_to_p):
    tt, mat = [(0,0),(0,1),(1,1),(1,0)][m]
    acc = A_SET + 32*mat + 16*tt
    dst = (P_SET + 32*mat + 16*tt) if last_to_p else acc
    src = "0" if first_c0 else vr(acc, 16)
    wf = WF + 8*(s % 3) + 4*mat
    return f"v_mfma_f32_32x32x16_bf16 {vr(dst,16)}, {vr(wf,4)}, {XF(s,tt)}, {src}"
def mfma_half(s, mat, fc):
    acc = A_SET + 32*mat
    src = "0" if s == 0 else vr(acc, 16)
    wf = WF + 8*(s % 3) + 4*mat
    return f"v_mfma_f32_32x32x16_bf16 {vr(acc,16)}, {vr(wf,4)}, {XF(s,fc)}, {src}"

def gelu_ops(tiles):
    ops = []; gi = 0
    for (gb, ub, so) in tiles:
        for sp in range(2):
            for half in range(2):
                g = [gb + 8*sp + 4*half + i for i in range(4)]
                u = [ub + 8*sp + 4*half + i for i in range(4)]
                t = [GT + i for i in range(4)]
                p = [GT + 4 + i for i in range(4)]
                hb = HP + 4*sp
                hp = hb + 2*half
                for i in range(4): ops.append((f"v_mul_f32 v{t[i]}, v{g[i]}, v{g[i]}", 4, None, None))
                for i in range(4): ops.append((f"v_fma_f32 v{t[i]}, v{t[i]}, v{V_C2}, v{V_C1}", 5, None, None))
                for i in range(4): ops.append((f"v_mul_f32 v{t[i]}, v{t[i]}, v{g[i]}", 4, None, None))
                for i in range(4): ops.append((f"v_exp_f32 v{t[i]}, v{t[i]}", 8, None, None))
                for i in range(4): ops.append((f"v_mul_f32 v{p[i]}, v{g[i]}, v{u[i]}", 4, None, None))
                for i in range(4): ops.append((f"v_add_f32 v{t[i]}, 1.0, v{t[i]}", 4, None, None))
                for i in range(4): ops.append((f"v_rcp_f32 v{t[i]}, v{t[i]}", 8, None, None))
                for i in range(4): ops.append((f"v_mul_f32 v{p[i]}, v{p[i]}, v{t[i]}", 4, None, None))
                ops.append((f"v_cvt_pk_bf16_f32 v{hp}, v{p[0]}, v{p[1]}", 5, None, None))
                ops.append((f"v_cvt_pk_bf16_f32 v{hp+1}, v{p[2]}, v{p[3]}", 5, None, None))
                if half == 1:
                    ops.append((f"buffer_store_dwordx4 {vr(hb,4)}, v{V_HOFF}, s[{S_H}:{S_H+3}], s{so} offen offset:{sp*1024} {HSTORE_FLAGS}", 20, "st", None))
    return ops
def gelu_full(): return gelu_ops([(P_SET, P_SET+32, S_HO0), (P_SET+16, P_SET+48, S_HO1)])
def gelu_half(): return gelu_ops([(A_SET, A_SET+32, S_HOH)])

BUDGET = 24
def unit(a, mode, override=None, stamps=False, fc=0):
    first = mode == "first"; half = mode == "half"
    G = 2 if half else 4
    NG = 36*G
    fixed = [[] for _ in range(NG)]
    for s in range(36):
        s2 = s + 2
        areg = None
        if s2 < 36:
            c2 = s2 // 4; slot = SG[c2] if first else c2; rtag = f"r{s2}"
        else:
            if half: continue
            slot = 0; rtag = f"r{s2-36}"
            if not first: areg = V_TRN
        for k in range(4):
            fixed[G*s + (k*G)//4].append((wread(s2 % 36, k, slot, areg), 4, None, rtag))
        if first and s2 < 36:
            for tt in range(2):
                fixed[4*s+tt].append((xread(s2, tt), 4, None, rtag))
    def put(step, items, m=None):
        if m is None:
            cand = (1, 3, 2, 0) if G == 4 else (1, 0)
            m = min(cand, key=lambda mm: sum(x[1] for x in fixed[G*step+mm]))
        fixed[G*step+m].extend(items)
    if first:
        k = 0
        for c in (3, 4):
            for i in range(4): put(k // 4, dma_x(c, XI[c], i, f"x{c}")); k += 1
            for i in range(4): put(k // 4, dma_w(c, SG[c], i, f"w{c}")); k += 1
        for c in range(4):
            st = 4*c + 3
            for i in range(4): put(st + i // 2, dma_x(c+5, XI[c], i, f"x{c+5}"))
            for i in range(4): put(st + 2 + i // 2, dma_w(c+5, SG[c], i, f"w{c+5}"))
        put(19, adv_w(), 0)
        for c in range(4, 7):
            st = 4*c + 3
            n0 = 2*(c-4)
            for i in range(4): put(st + i // 2, dma_w(n0, XI[c], i, f"n{n0}"))
            for i in range(4): put(st + 2 + i // 2, dma_w(n0+1, SG[c], i, f"n{n0+1}"))
    else:
        k = 0
        for c in (6, 7, 8):
            for i in range(4):
                st = [0,0,1,1, 2,3,4,5, 6,7,8,9][k]
                put(st, dma_w(c, c, i, f"c{c}")); k += 1
        if not half:
            for j, cs in ((11, (0, 1, 2)), (23, (3, 4, 5))):
                k = 0
                for c in cs:
                    for i in range(4):
                        st = j + [0,0,1,1, 2,3,4,5, 6,7,8,9][k]
                        put(st, dma_w(c, c, i, f"n{c}")); k += 1
    g_ops = [] if first else gelu_full()
    g0, g1 = G, G*35
    room = [max(2, BUDGET - sum(x[1] for x in fixed[g])) if g0 <= g < g1 else 0 for g in range(NG)]
    tot_room = sum(room); tot_cost = sum(x[1] for x in g_ops)
    gel = [[] for _ in range(NG)]
    acc_room = 0; used = 0; gi = 0
    for g in range(NG):
        acc_room += room[g]
        target = tot_cost * acc_room / tot_room if tot_room else 0
        while gi < len(g_ops) and used + g_ops[gi][1] / 2 <= target:
            gel[g].append(g_ops[gi]); used += g_ops[gi][1]; gi += 1
    assert gi == len(g_ops)
    em = Emit(a)
    for s in range(36):
        bar = (s % 4 == 3) if first else (s % 12 == 11)
        if half and s == 35: bar = False
        if bar:
            if first:
                c = s // 4
                need = (f"x{c+2}", f"w{c+2}") if c < 7 else (("n0",) if c == 7 else ("n0", "n1", "n2", "n3"))
            elif half:
                need = [("c3", "c4", "c5", "c6"), ("c7", "c8")][s // 12]
            else:
                need = [("c3", "c4", "c5", "c6"), ("c7", "c8", "n0"), ("n1", "n2", "n3")][s // 12]
            a.wait(vm=lambda t: t in need, lg=lambda t: t == f"r{s}", override=override)
            a("s_barrier")
            if first: stamp(a, stamps and s in (3, 19, 35))
            if mode == "loop" and s == 11:
                a(f"s_cmp_eq_u32 s{S_CNT}, 1\ns_cselect_b32 s50, s{S_WJ}, 128\ns_ashr_i32 s51, s50, 31")
                a(f"s_add_u32 s{S_W}, s{S_W}, s50\ns_addc_u32 s{S_W+1}, s{S_W+1}, s51\ns_sub_u32 s{S_W+2}, s{S_W+2}, s50")
        else:
            a.wait(lg=lambda t: t == f"r{s}")
        for m in range(G):
            a(mfma_half(s, m, fc) if half else mfma(s, m, s == 0, s == 35))
            em(fixed[G*s+m] + gel[G*s+m])
    a.vm = [("c" + t[1:]) if t[0] == "n" else t for t in a.vm]

def ut_code(a, name):
    T = V_T; L_ = V_LANE
    a(f"v_lshrrev_b32 v{T}, 4, v{L_}")
    a(f"v_bfe_u32 v{T+1}, v{L_}, 2, 2")
    a(f"v_lshlrev_b32 v{T+2}, 3, v{T}")
    a(f"v_add_u32 v{T+2}, v{T+2}, v{T+1}")
    a(f"v_lshlrev_b32 v{T+2}, 7, v{T+2}")
    a(f"s_lshl_b32 s53, s{S_WAVE}, 12\ns_add_u32 s53, s53, s51")
    a(f"v_add_u32 v{T+2}, s53, v{T+2}")
    a(f"v_and_b32 v{T+3}, 1, v{L_}")
    a(f"v_lshlrev_b32 v{T+3}, 3, v{T+3}")
    a(f"v_add_u32 v{T+2}, v{T+2}, v{T+3}")
    a(f"v_lshlrev_b32 v{T+3}, 2, v{T}")
    a(f"v_lshrrev_b32 v{T+1}, 1, v{T+1}")
    a(f"v_add_u32 v{T+3}, v{T+3}, v{T+1}")
    a(f"v_bfe_u32 v{T+4}, v{L_}, 1, 1")
    a(f"v_and_b32 v{T+5}, 7, v{T+3}")
    a(f"v_xor_b32 v{T+5}, v{T+5}, v{T+4}")
    a(f"v_lshlrev_b32 v{T+5}, 4, v{T+5}")
    a(f"v_add_u32 v{T+3}, 2, v{T+3}")
    a(f"v_and_b32 v{T+3}, 7, v{T+3}")
    a(f"v_xor_b32 v{T+3}, v{T+3}, v{T+4}")
    a(f"v_lshlrev_b32 v{T+3}, 4, v{T+3}")
    D = A_SET
    for cg in range(4):
        a(f"v_xor_b32 v{T+6}, {cg*32}, v{T+5}\nv_add_u32 v{T+6}, v{T+6}, v{T+2}")
        a(f"v_xor_b32 v{T+7}, {cg*32}, v{T+3}\nv_add_u32 v{T+7}, v{T+7}, v{T+2}")
        a(f"ds_read_b64_tr_b16 {vr(D+4*cg,2)}, v{T+6}")
        a(f"ds_read_b64_tr_b16 {vr(D+4*cg+2,2)}, v{T+7} offset:512")
    a(f"v_and_b32 v{T+6}, 15, v{L_}\nv_lshlrev_b32 v{T+6}, 12, v{T+6}\nv_lshlrev_b32 v{T+7}, 4, v{T}\nv_add_u32 v{T+6}, v{T+6}, v{T+7}")
    a(f"s_add_u32 s56, s4, {WS_UT}\ns_addc_u32 s57, s5, 0\ns_mov_b32 s58, {UT_BYTES}\ns_mov_b32 s59, 0x20000")
    a(f"s_lshl_b32 s52, s52, 18\ns_lshl_b32 s53, s{S_MT}, 8\ns_add_u32 s52, s52, s53\ns_lshl_b32 s53, s{S_WAVE}, 6\ns_add_u32 s52, s52, s53")
    a("s_waitcnt lgkmcnt(0)")
    for cg in range(4):
        a(f"s_add_u32 s53, s52, {cg*16*4096}")
        a(f"buffer_store_dwordx4 {vr(D+4*cg,4)}, v{T+6}, s[56:59], s53 offen {HSTORE_FLAGS}")

def gen_k1(a, name, stamps=False):
    NST[0] = 0
    L_ = V_LANE; T = V_T
    a(f".globl {name}\n.p2align 8\n.type {name},@function")
    a.label(name)
    a("s_cmp_ge_u32 s2, 256")
    a(f"s_cbranch_scc1 {name}_end")
    a(f"s_load_dwordx2 s[8:9], s[0:1], {KA_U}")
    a(f"s_load_dwordx4 s[64:67], s[0:1], {KA_WG}")
    a(f"s_load_dwordx2 s[4:5], s[0:1], {KA_WS}")
    kg = kgen.KGen(a, 0, 62, S_FC, 63, 55, V_LANE, S_KG, "kmap_table")
    kg.sloads()
    stamp_init(a, stamps)
    stamp(a, stamps)
    a(f"v_and_b32 v{V_LANE}, 63, v0")
    a(f"v_lshrrev_b32 v{V_T}, 6, v0")
    a("s_nop 0")
    a(f"v_readfirstlane_b32 s{S_WAVE}, v{V_T}")
    a("s_and_b32 s3, s2, 7")
    a("s_lshr_b32 s50, s2, 3")
    a("s_and_b32 s51, s3, 1\ns_lshl_b32 s51, s51, 3")
    a("s_and_b32 s52, s50, 7")
    a(f"s_add_u32 s{S_MT}, s51, s52")
    a("s_lshr_b32 s53, s50, 3")
    a("s_lshr_b32 s54, s3, 1")
    a("s_lshl_b32 s55, s54, 2\ns_add_u32 s55, s55, s53")
    a("s_and_b32 s56, s55, 1")
    a("s_mul_i32 s57, s55, 9\ns_add_u32 s57, s57, s56\ns_lshr_b32 s57, s57, 1")
    a(f"s_movk_i32 s59, 128\ns_cmp_eq_u32 s56, 0\ns_cselect_b32 s58, 4, -1\ns_cselect_b32 s{S_WJ}, s59, -512\ns_add_u32 s58, s57, s58")
    a(f"s_and_b32 s{S_FC}, s{S_WAVE}, 1\ns_lshr_b32 s{S_TR}, s{S_WAVE}, 1")
    a(f"s_xor_b32 s{S_HX}, s{S_FC}, s56\ns_lshl_b32 s{S_HX}, s{S_HX}, 6")
    a(f"s_lshl_b32 s59, s{S_MT}, 2\ns_lshl_b32 s60, s{S_TR}, 1\ns_add_u32 s59, s59, s60")
    a(f"s_mul_i32 s60, s59, 288\ns_lshl_b32 s61, s{S_FC}, 1\ns_add_u32 s60, s60, s61\ns_lshl_b32 s60, s60, 10\ns_lshl_b32 s61, s57, 12\ns_add_u32 s{S_HO0}, s60, s61")
    a(f"s_add_u32 s{S_HO1}, s{S_HO0}, {288*1024}")
    a(f"s_add_u32 s59, s59, s{S_FC}\ns_mul_i32 s59, s59, 288\ns_lshl_b32 s60, s58, 2\ns_add_u32 s59, s59, s60\ns_lshl_b32 s60, s56, 1\ns_add_u32 s59, s59, s60\ns_lshl_b32 s{S_HOH}, s59, 10")
    a(f"s_lshl_b32 s{S_M0W}, s{S_WAVE}, 12")
    a(f"s_lshl_b32 s58, s{S_MT}, 7\ns_lshl_b32 s59, s{S_WAVE}, 5\ns_add_u32 s58, s58, s59\ns_mul_i32 s{S_XB}, s58, 1152")
    a("s_lshl_b32 s58, s53, 1\ns_add_u32 s58, s58, s52\ns_cmp_eq_u32 s54, 2\ns_cselect_b32 s59, 2, 0\ns_add_u32 s58, s58, s59")
    a("s_cmp_ge_u32 s58, 9\ns_cselect_b32 s59, 9, 0\ns_sub_u32 s58, s58, s59")
    a("s_mov_b32 s61, s58")
    a(f"s_mul_i32 s60, s{S_FC}, 294912")
    for j in range(9):
        a(f"s_mul_i32 s59, s58, 589824\ns_add_u32 s{S_WC+j}, s59, s60")
        a(f"s_lshl_b32 s59, s58, 7\ns_add_u32 s{S_XC+j}, s59, s{S_XB}")
        if j < 8:
            a("s_add_u32 s58, s58, 1\ns_cmp_eq_u32 s58, 9\ns_cselect_b32 s58, 0, s58")
    a(f"s_lshl_b32 s62, s2, 1\ns_add_u32 s62, s62, s{S_TR}")
    a(f"s_lshl_b32 s63, s{S_WAVE}, 14\ns_cmp_ge_u32 s{S_WAVE}, 2\ns_cselect_b32 s59, {6*16384}, 0\ns_add_u32 s63, s63, s59")
    a("s_xor_b32 s55, s63, 16384")
    a("s_movk_i32 s60, 9216")
    a(f"v_lshrrev_b32 v{T+4}, 3, v{L_}")
    a(f"v_mul_lo_u32 v{V_WO}, v{T+4}, s60")
    a(f"v_lshrrev_b32 v{T+5}, 4, v{L_}")
    a(f"v_and_b32 v{T+6}, 1, v{T+5}")
    a(f"v_lshlrev_b32 v{T+6}, 2, v{T+6}")
    a(f"v_and_b32 v{T+7}, 7, v{L_}")
    a(f"v_xor_b32 v{T+6}, v{T+6}, v{T+7}")
    a(f"v_lshlrev_b32 v{T+6}, 4, v{T+6}")
    a(f"v_add_u32 v{V_WO}, v{V_WO}, v{T+6}")
    for i in range(1, 4):
        a(f"v_add_u32 v{V_WO+i}, {i*(73728-1024)}, v{V_WO}")
    a(f"v_mul_u32_u24 v{T+8}, 1152, v{T+4}")
    a(f"v_xor_b32 v{T+6}, v{T+7}, v{T+5}")
    a(f"v_lshlrev_b32 v{T+6}, 4, v{T+6}")
    a(f"v_add_u32 v{V_XO}, v{T+8}, v{T+6}")
    a(f"v_xor_b32 v{T+6}, 64, v{T+6}")
    a(f"v_add_u32 v{V_XO+1}, v{T+8}, v{T+6}")
    a(f"v_add_u32 v{V_XO+1}, {9216-1024}, v{V_XO+1}")
    a(f"v_add_u32 v{V_XO+2}, {2*(9216-1024)}, v{V_XO}")
    a(f"v_add_u32 v{V_XO+3}, {2*(9216-1024)}, v{V_XO+1}")
    a("s_waitcnt lgkmcnt(0)")
    stamp(a, stamps)
    a(f"s_mov_b32 s10, {X_BYTES}\ns_mov_b32 s11, 0x20000")
    a(f"s_cmp_lt_u32 s{S_WAVE}, 2")
    a("s_cselect_b32 s12, s64, s66\ns_cselect_b32 s13, s65, s67")
    a("s_lshl_b32 s58, s57, 7")
    a("s_add_u32 s12, s12, s58\ns_addc_u32 s13, s13, 0")
    a(f"s_sub_u32 s14, {W_BYTES}, s58\ns_mov_b32 s15, 0x20000")
    kg.issue_params(pb=0)
    emit = Emit(a)
    for c in range(1):
        for i in range(4): emit(dma_x(c, XI[c], i, f"x{c}"))
        for i in range(4): emit(dma_w(c, SG[c], i, f"w{c}"))
    stamp(a, stamps)
    def grp_of(c):
        g = []
        for i in range(4):
            it = dma_x(c, XI[c], i, f"x{c}")[0]
            g.append(([f"s_add_u32 m0, s{S_M0W}, {XI[c]*16384}", "s_nop 0"] if i == 0 else []) + [it[0][1]])
        for i in range(4):
            it = dma_w(c, SG[c], i, f"w{c}")[0]
            g.append(([f"s_add_u32 m0, s{S_M0W}, {SG[c]*16384}", "s_nop 0"] if i == 0 else []) + [it[0][1]])
        return g
    for c in (1, 2):
        for i in range(4): a.vm_issue(f"x{c}")
        for i in range(4): a.vm_issue(f"w{c}")
    if "kgA" in OPT:
        kg.compute(wait_params=8, wait_map=8, pb=0, pre=(), extra=(), post=grp_of(1) + kg.map_groups() + grp_of(2), st=(lambda: stamp(a, stamps and NST[0] < 6)))
    elif "kgB" in OPT:
        for g in grp_of(1):
            for x in g: a(x)
        kg.compute(wait_params=16, wait_map=8, pb=0, pre=(), extra=kg.map_groups(), post=grp_of(2), st=(lambda: stamp(a, stamps and NST[0] < 6)))
    else:
        kg.compute(wait_params=8, wait_map=8, pb=0, pre=grp_of(1), extra=kg.map_groups(), post=grp_of(2), st=(lambda: stamp(a, stamps and NST[0] < 6)))
    NST[0] = 6
    stamp_init2(a, stamps)
    stamp(a, stamps)
    a(f"s_add_u32 s16, s4, {WS_H}\ns_addc_u32 s17, s5, 0" if WS_H else "s_mov_b32 s16, s4\ns_mov_b32 s17, s5")
    a(f"s_mov_b32 s18, {H_BYTES}\ns_mov_b32 s19, 0x20000")
    a(f"v_lshlrev_b32 v{V_HOFF}, 4, v{L_}")
    a(f"v_mov_b32 v{V_C2}, 0x{f2u(GELU_C2):08x}")
    a(f"v_mov_b32 v{V_C1}, 0x{f2u(GELU_C1):08x}")
    a(f"v_lshrrev_b32 v{T}, 5, v{L_}")
    a(f"v_lshlrev_b32 v{T}, 3, v{T}")
    a(f"v_bfe_u32 v{T+2}, v{L_}, 2, 2")
    a(f"v_add_u32 v{T}, v{T}, v{T+2}")
    a(f"v_lshlrev_b32 v{T}, 7, v{T}")
    a(f"v_bfe_u32 v{T+3}, v{L_}, 4, 1")
    a(f"v_lshlrev_b32 v{T+3}, 1, v{T+3}")
    a(f"v_bfe_u32 v{T+4}, v{L_}, 1, 1")
    a(f"v_add_u32 v{T+3}, v{T+3}, v{T+4}")
    a(f"s_lshl_b32 s58, s{S_FC}, 2")
    a(f"v_add_u32 v{T+3}, s58, v{T+3}")
    a(f"v_lshrrev_b32 v{T+2}, 1, v{T+2}")
    a(f"v_lshlrev_b32 v{T+2}, 2, v{T+2}")
    a(f"v_xor_b32 v{T+3}, v{T+3}, v{T+2}")
    a(f"v_lshlrev_b32 v{T+3}, 4, v{T+3}")
    a(f"v_add_u32 v{T}, v{T}, v{T+3}")
    a(f"v_and_b32 v{T+4}, 1, v{L_}")
    a(f"v_lshlrev_b32 v{T+4}, 3, v{T+4}")
    a(f"v_add_u32 v{V_TR}, v{T}, v{T+4}")
    a(f"v_add_u32 v{V_TR+1}, 0x10000, v{V_TR}")
    a(f"v_add_u32 v{V_TR+2}, 0x20000, v{V_TR}")
    a(f"v_mov_b32 v{V_TRN}, v{V_TR}")
    a(f"v_and_b32 v{T}, 31, v{L_}")
    a(f"v_bfe_u32 v{T+1}, v{L_}, 1, 3")
    a(f"v_lshrrev_b32 v{T+2}, 5, v{L_}")
    a(f"v_xor_b32 v{T+1}, v{T+1}, v{T+2}")
    a(f"v_lshlrev_b32 v{T+1}, 4, v{T+1}")
    a(f"s_lshl_b32 s58, s{S_TR}, 6")
    a(f"v_add_u32 v{T}, s58, v{T}")
    a(f"v_lshlrev_b32 v{T}, 7, v{T}")
    a(f"v_add_u32 v{T}, v{T}, v{T+1}")
    for sp in range(4):
        a(f"v_xor_b32 v{V_XR+sp}, {sp<<5}, v{T}")
        a(f"v_add_u32 v{V_XR+4+sp}, 0x10000, v{V_XR+sp}")
        a(f"v_add_u32 v{V_XR+8+sp}, 0x20000, v{V_XR+sp}")
    a.wait(vm=lambda t: t in ("x0", "w0", "x1", "w1"), lg0=True)
    a("s_barrier")
    stamp(a, stamps)
    a("s_cmp_eq_u32 s54, 3")
    a(f"s_cbranch_scc1 {name}_nout")
    a("s_cmp_eq_u32 s54, 2\ns_cselect_b32 s50, 1, 0\ns_cmp_eq_u32 s53, 3\ns_cselect_b32 s51, 0, s50\ns_cmp_eq_u32 s51, 1")
    a(f"s_cbranch_scc1 {name}_nout")
    a(f"s_cmp_eq_u32 s54, 1\ns_cselect_b32 s50, 1, 0")
    a(f"s_lshl_b32 s51, s50, 15\ns_add_u32 s51, s51, {XI[0]*16384}")
    a("s_add_u32 s52, s61, s50\ns_cmp_eq_u32 s52, 9\ns_cselect_b32 s52, 0, s52")
    ut_code(a, name)
    a.label(f"{name}_nout")
    for s in range(2):
        for k in range(4): a(wread(s, k, SG[0])); a.lg_issue(f"r{s}")
        for tt in range(2): a(xread(s, tt)); a.lg_issue(f"r{s}")
    unit(a, "first", stamps=stamps)
    a(f"s_mov_b32 s{S_CNT}, 3")
    sv_vm, sv_lg = list(a.vm), list(a.lg)
    a.mute = True
    a.waits = []; unit(a, "loop"); w1 = list(a.waits)
    a.waits = []; unit(a, "loop"); w2 = list(a.waits)
    a.waits = []; unit(a, "loop"); w3 = list(a.waits)
    assert w2 == w3
    a.mute = False
    ov = [min([v for v in (x, y) if v is not None], default=None) for x, y in zip(w1, w2)]
    a.vm, a.lg = sv_vm, sv_lg
    a(".p2align 6")
    a.label(f"{name}_loop")
    a(f"s_cmp_eq_u32 s{S_CNT}, 1\ns_cselect_b32 s50, s{S_HX}, 0\nv_xor_b32 v{V_TRN}, s50, v{V_TR}")
    unit(a, "loop", override=list(ov))
    a(f"s_add_u32 s{S_HO0}, s{S_HO0}, 4096")
    a(f"s_add_u32 s{S_HO1}, s{S_HO1}, 4096")
    a(f"s_sub_u32 s{S_CNT}, s{S_CNT}, 1")
    a(f"s_cmp_lg_u32 s{S_CNT}, 0")
    a(f"s_cbranch_scc1 {name}_loop")
    stamp(a, stamps)
    for w in range(3): a(f"v_xor_b32 v{V_TR+w}, s{S_HX}, v{V_TR+w}")
    a(f"s_cmp_eq_u32 s{S_FC}, 1")
    a(f"s_cbranch_scc1 {name}_half1")
    sv_vm, sv_lg = list(a.vm), list(a.lg)
    unit(a, "half", fc=0)
    a(f"s_branch {name}_halfdone")
    a.label(f"{name}_half1")
    a.vm, a.lg = sv_vm, sv_lg
    unit(a, "half", fc=1)
    a.label(f"{name}_halfdone")
    stamp(a, stamps)
    a("s_nop 7\ns_nop 7")
    for ins, cost, vt, lt in gelu_half():
        a(ins)
    a.wait_all()
    stamp(a, stamps)
    if stamps: stamp_store2(a, 0)
    a.label(f"{name}_end")
    a("s_endpgm")
```

```python
from asmlib import *
from layout import *
import k1
from k1 import stamp, stamp_cyc, stamp_store2, stamp_init, stamp_init2, NST, f2u
import os
OPT = set(os.environ.get("K2OPT", "").split(","))

V_LANE = k1.V_LANE
S_WAVE = k1.S_WAVE
ACC = 0
FB = 96
V_A = 156
V_B = 162
V_HD = 164
V_WD = 165
V_T = 170
S_HS, S_WS, S_PS = 8, 12, 16
S_M0H, S_M0W, S_HB, S_WB, S_ST, S_HO, S_WO, S_CNT, S_T0, S_T1 = range(21, 31)
NSLOT = 6; SLOT = 20480

def frA(buf, dtl): return FB + 20*buf + 4*dtl
def frB(buf, tt): return FB + 20*buf + 12 + 4*tt

def g2_reads(k, slot):
    buf = k % 3; ks = k & 1
    r = []
    def rb(tt):
        off = slot*SLOT + tt*2048 + ks*1024
        win, off = off >> 16, off & 0xffff
        return f"ds_read_b128 {vr(frB(buf,tt),4)}, v{V_B+win} offset:{off}"
    def ra(dtl, rd):
        off = slot*SLOT + 8192 + (2*ks+rd)*3072
        win, off = off >> 16, off & 0xffff
        return f"ds_read_b64_tr_b16 {vr(frA(buf,dtl)+2*rd,2)}, v{V_A+3*win+dtl} offset:{off}"
    return [(rb(0), "B0"), (ra(0,0), "A0"), (ra(0,1), "A0"), (rb(1), "B1"), (ra(1,0), "A1"), (ra(1,1), "A1"), (ra(2,0), "A2"), (ra(2,1), "A2")]

def g2_dma(a, slot, tag):
    L = []
    L.append((f"s_add_u32 m0, s{S_M0H}, {slot*SLOT}", None))
    L.append((f"s_nop 0", None))
    L.append((f"buffer_load_dwordx4 v{V_HD}, s[{S_HS}:{S_HS+3}], s{S_HO} offen lds", tag))
    L.append((f"buffer_load_dwordx4 v{V_HD}, s[{S_HS}:{S_HS+3}], s{S_HO} offen offset:1024 lds", tag))
    L.append((f"s_add_u32 m0, s{S_M0W}, {slot*SLOT}", None))
    L.append((f"s_nop 0", None))
    for seg in range(3):
        L.append((f"buffer_load_dwordx4 v{V_WD+seg}, s[{S_WS}:{S_WS+3}], s{S_WO} offen offset:{seg*1024} lds", tag))
    L.append((f"s_add_u32 s{S_ST}, s{S_ST}, 1", None))
    L.append((f"s_cmp_eq_u32 s{S_ST}, 36", None))
    L.append((f"s_cselect_b32 s{S_ST}, 0, s{S_ST}", None))
    L.append((f"s_lshl_b32 s{S_T0}, s{S_ST}, 11", None))
    L.append((f"s_add_u32 s{S_HO}, s{S_HB}, s{S_T0}", None))
    L.append((f"s_mul_i32 s{S_T0}, s{S_ST}, {32*1152}", None))
    L.append((f"s_add_u32 s{S_WO}, s{S_WB}, s{S_T0}", None))
    return L

def g2_block(a, first, override=None):
    for k in range(12):
        st = k // 2; ks = k & 1
        if ks == 0:
            nxt = (st + 1) % 6
            a.wait(vm=lambda t: t == f"s{nxt}", override=override)
            a("s_barrier")
            if st == 1 and not first:
                a(f"s_cmp_eq_u32 s{S_CNT}, 1\ns_cselect_b32 s{S_HS+2}, 0, s{S_HS+2}\ns_cselect_b32 s{S_WS+2}, 0, s{S_WS+2}")
            fslot = (st - 1) % 6
            dm = g2_dma(a, fslot, f"s{fslot}")
            if not first:
                if "nodma" in OPT: dm = [x for x in dm if x[1] is None]
                if "noH" in OPT: dm = [x for x in dm if not (x[1] and f"s[{S_HS}:" in x[0])]
                if "noW" in OPT: dm = [x for x in dm if not (x[1] and f"s[{S_WS}:" in x[0])]
            di = 0
        ka, kb = (k + 1) % 12, (k + 2) % 12
        rds = [(i_, f"{t_}@{ka}") for i_, t_ in g2_reads(ka, ka // 2)[6:]] + [(i_, f"{t_}@{kb}") for i_, t_ in g2_reads(kb, kb // 2)[:6]]
        order = [(0,0),(0,1),(1,0),(1,1),(2,0),(2,1)]
        ri = 0
        for mi, (dtl, tt) in enumerate(order):
            need = {f"B{tt}@{k}", f"A{dtl}@{k}"}
            a.wait(lg=lambda t: t in need)
            acc = ACC + 16*(2*dtl + tt)
            src = "0" if (first and k == 0) else vr(acc,16)
            if first or "nomfma" not in OPT:
                a(f"v_mfma_f32_32x32x16_bf16 {vr(acc,16)}, {vr(frA(k%3,dtl),4)}, {vr(frB(k%3,tt),4)}, {src}")
            n = [2, 1, 2, 1, 1, 1][mi]
            for _ in range(n):
                ins, tg = rds[ri]; ri += 1
                a(ins); a.lg_issue(tg)
            nd = (len(dm) * (6*ks + mi + 1)) // 12
            while di < nd:
                ins, tg = dm[di]; di += 1
                a(ins)
                if tg: a.vm_issue(tg)

def gen_gemm2(a, name, stamps):
    L_ = V_LANE; T = V_T
    a(f"s_load_dwordx2 s[12:13], s[0:1], {KA_WD}")
    a("s_lshr_b32 s50, s3, 1")
    a("s_and_b32 s51, s3, 1\ns_lshl_b32 s51, s51, 3\ns_and_b32 s52, s62, 7\ns_add_u32 s51, s51, s52")
    a("s_lshr_b32 s53, s62, 3")
    a(f"s_lshr_b32 s54, s{S_WAVE}, 1")
    a(f"s_and_b32 s55, s{S_WAVE}, 1")
    a("s_mul_i32 s56, s53, 12\ns_lshl_b32 s57, s52, 2\ns_add_u32 s56, s56, s57")
    if "norot" in OPT: a("s_mov_b32 s56, 0")
    a(f"s_cmp_ge_u32 s56, 36\ns_cselect_b32 s57, 36, 0\ns_sub_u32 s{S_ST}, s56, s57")
    a(f"s_lshl_b32 s56, s51, 2\ns_add_u32 s56, s56, s{S_WAVE}\ns_mul_i32 s56, s56, 288\ns_mul_i32 s57, s50, 72\ns_add_u32 s56, s56, s57\ns_lshl_b32 s{S_HB}, s56, 10")
    a(f"s_mul_i32 s56, s50, 1152\ns_lshl_b32 s57, s{S_WAVE}, 3\ns_add_u32 s56, s56, s57\ns_mul_i32 s56, s56, 1152\ns_mul_i32 s57, s53, 384\ns_add_u32 s{S_WB}, s56, s57")
    a(f"s_lshl_b32 s{S_T0}, s{S_ST}, 11\ns_add_u32 s{S_HO}, s{S_HB}, s{S_T0}")
    a(f"s_mul_i32 s{S_T0}, s{S_ST}, {32*1152}\ns_add_u32 s{S_WO}, s{S_WB}, s{S_T0}")
    a(f"s_lshl_b32 s{S_M0H}, s{S_WAVE}, 11")
    a(f"s_mul_i32 s{S_M0W}, s{S_WAVE}, 3072\ns_add_u32 s{S_M0W}, s{S_M0W}, 8192")
    a(f"v_lshlrev_b32 v{V_HD}, 4, v{L_}")
    a(f"v_lshrrev_b32 v{T}, 3, v{L_}")
    a(f"v_mul_u32_u24 v{V_WD}, 1152, v{T}")
    a(f"v_bfe_u32 v{T+1}, v{L_}, 4, 1")
    a(f"v_lshlrev_b32 v{T+1}, 2, v{T+1}")
    a(f"v_and_b32 v{T+2}, 7, v{L_}")
    a(f"v_xor_b32 v{T+1}, v{T+1}, v{T+2}")
    a(f"v_lshlrev_b32 v{T+1}, 4, v{T+1}")
    a(f"v_add_u32 v{V_WD}, v{V_WD}, v{T+1}")
    a(f"v_subrev_u32 v{V_WD+1}, {1024-128}, v{V_WD}")
    a(f"v_subrev_u32 v{V_WD+2}, {2*(1024-128)}, v{V_WD}")
    for i in range(3): a(f"v_add_u32 v{V_WD+i}, 1792, v{V_WD+i}")
    a("s_waitcnt lgkmcnt(0)")
    a(f"s_sub_u32 s12, s12, 1792\ns_subb_u32 s13, s13, 0\ns_mov_b32 s14, {W_BYTES + 1792}\ns_mov_b32 s15, 0x20000")
    a(f"s_add_u32 s8, s4, {WS_H}\ns_addc_u32 s9, s5, 0\ns_mov_b32 s10, {H_BYTES}\ns_mov_b32 s11, 0x20000")
    stamp(a, stamps)
    def emit(L):
        for ins, tg in L:
            a(ins)
            if tg: a.vm_issue(tg)
    for st in range(5):
        emit(g2_dma(a, st, f"s{st}"))
    a(f"v_lshrrev_b32 v{T}, 5, v{L_}")
    a(f"v_lshlrev_b32 v{T}, 2, v{T}")
    a(f"v_bfe_u32 v{T+1}, v{L_}, 2, 2")
    a(f"v_add_u32 v{T}, v{T}, v{T+1}")
    a(f"v_lshlrev_b32 v{T}, 7, v{T}")
    a(f"v_and_b32 v{T+2}, 1, v{L_}")
    a(f"v_lshlrev_b32 v{T+2}, 1, v{T+2}")
    a(f"v_bfe_u32 v{T+3}, v{L_}, 4, 1")
    a(f"v_add_u32 v{T+2}, v{T+2}, v{T+3}")
    a(f"v_lshlrev_b32 v{T+2}, 4, v{T+2}")
    a(f"v_add_u32 v{T}, v{T}, v{T+2}")
    a(f"v_bfe_u32 v{T+2}, v{L_}, 1, 1")
    a(f"v_lshlrev_b32 v{T+2}, 3, v{T+2}")
    a(f"v_add_u32 v{T}, v{T}, v{T+2}")
    a(f"v_lshrrev_b32 v{T+1}, 1, v{T+1}")
    a(f"v_lshlrev_b32 v{T+1}, 6, v{T+1}")
    for dtl in range(3):
        a(f"s_mul_i32 s56, s55, 3\ns_add_u32 s56, s56, {dtl}\ns_and_b32 s57, s56, 1\ns_lshl_b32 s57, s57, 6\ns_lshr_b32 s56, s56, 1\ns_lshl_b32 s56, s56, 10")
        a(f"v_xor_b32 v{T+2}, s57, v{T+1}")
        a(f"v_add_u32 v{T+2}, v{T+2}, v{T}")
        a(f"v_add_u32 v{V_A+dtl}, s56, v{T+2}")
        a(f"v_add_u32 v{V_A+3+dtl}, 0x10000, v{V_A+dtl}")
    a(f"s_lshl_b32 s56, s54, 12")
    a(f"v_add_u32 v{V_B}, s56, v{V_HD}")
    a(f"v_add_u32 v{V_B+1}, 0x10000, v{V_B}")
    a.wait(vm=lambda t: t == "s0")
    a("s_barrier")
    stamp(a, stamps)
    for ins, tg in g2_reads(0, 0):
        a(ins); a.lg_issue(f"{tg}@0")
    for ins, tg in g2_reads(1, 0)[:6]:
        a(ins); a.lg_issue(f"{tg}@1")
    g2_block(a, True)
    sv_vm, sv_lg = list(a.vm), list(a.lg)
    a.mute = True
    a.waits = []; g2_block(a, False); w1 = list(a.waits)
    a.waits = []; g2_block(a, False); w2 = list(a.waits)
    a.mute = False
    ov = [min([v for v in (x, y) if v is not None], default=None) for x, y in zip(w1, w2)]
    a.vm, a.lg = sv_vm, sv_lg
    a(f"s_mov_b32 s{S_CNT}, 5")
    stamp(a, stamps); stamp_cyc(a, stamps)
    a(".p2align 6")
    a.label(f"{name}_g2loop")
    g2_block(a, False, override=list(ov))
    a(f"s_sub_u32 s{S_CNT}, s{S_CNT}, 1\ns_cmp_lg_u32 s{S_CNT}, 0\ns_cbranch_scc1 {name}_g2loop")
    stamp_cyc(a, stamps)
    stamp(a, stamps)
    a(f"s_add_u32 s16, s4, {WS_PART}\ns_addc_u32 s17, s5, 0\ns_mov_b32 s18, {PART_BYTES}\ns_mov_b32 s19, 0x20000")
    a("s_lshl_b32 s56, s51, 2\ns_lshl_b32 s57, s54, 1\ns_add_u32 s56, s56, s57")
    a("s_lshl_b32 s57, s50, 6\ns_add_u32 s56, s56, s57\ns_mul_i32 s56, s56, 18")
    a("s_mul_i32 s57, s53, 6\ns_add_u32 s56, s56, s57\ns_mul_i32 s57, s55, 3\ns_add_u32 s56, s56, s57\ns_lshl_b32 s56, s56, 12")
    a("s_nop 7\ns_nop 3")
    for dtl in range(3):
        for tt in range(2):
            a(f"s_add_u32 s57, s56, {(tt*18 + dtl)*4096}")
            acc = ACC + 16*(2*dtl + tt)
            for j in range(4):
                a(f"buffer_store_dwordx4 {vr(acc+4*j,4)}, v{V_HD}, s[16:19], s57 offen offset:{j*1024} {PFLAGS}")
    a("s_waitcnt vmcnt(0)")

PFLAGS = os.environ.get("PFLAGS", "sc1")

KC_PITCH = 4160
KC_BYTES = 4*KC_PITCH
U_OFF = 2*KC_BYTES
CW_REGION = 40960
def gen_conv(a, name, stamps):
    L_ = V_LANE
    ACCc = 0; FA = 32; FBc = 96
    VA, VB, VUO, VYO, VKD, VUZ = 160, 161, 162, 163, 164, 165
    UPF = 208; T = 190; PKR = 200
    sK, sU, sY = 8, 12, 16
    sCH, sLB, sT0, sT1, sKO, sSTR, sN, sUO = 21, 22, 24, 25, 27, 28, 29, 30
    a(f"s_mul_i32 s{sLB}, s{S_WAVE}, {CW_REGION}")
    a(f"s_add_u32 s8, s4, {WS_KREV-16}\ns_addc_u32 s9, s5, 0\ns_mov_b32 s10, {KREV_BYTES+16}\ns_mov_b32 s11, 0x20000")
    a(f"s_add_u32 s12, s4, {WS_UT}\ns_addc_u32 s13, s5, 0\ns_mov_b32 s14, {UT_BYTES}\ns_mov_b32 s15, 0x20000")
    a(f"s_add_u32 s16, s4, {WS_YT}\ns_addc_u32 s17, s5, 0\ns_mov_b32 s18, {UT_BYTES}\ns_mov_b32 s19, 0x20000")
    a(f"v_lshlrev_b32 v{VKD}, 4, v{L_}")
    def kdma(buf):
        G = []
        for c in range(4):
            G.append(([f"s_sub_u32 s{sT0}, s{sKO}, {2*c}", f"s_add_u32 m0, s{sLB}, {buf*KC_BYTES + c*KC_PITCH}", "s_nop 0",
                       f"buffer_load_dwordx4 v{VKD}, s[{sK}:{sK+3}], s{sT0} offen lds"], "k"))
            for it in range(1, 4):
                G.append(([f"buffer_load_dwordx4 v{VKD}, s[{sK}:{sK+3}], s{sT0} offen offset:{it*1024} lds"], "k"))
            G.append(([f"s_add_u32 m0, s{sLB}, {buf*KC_BYTES + c*KC_PITCH + 4096}", f"s_add_u32 s{sT0}, s{sT0}, 4096", "s_mov_b64 exec, 15",
                       f"buffer_load_dwordx4 v{VKD}, s[{sK}:{sK+3}], s{sT0} offen lds", "s_mov_b64 exec, -1"], "k"))
        return G
    def uload():
        return [([f"buffer_load_dwordx4 {vr(UPF+4*it,4)}, v{VKD}, s[{sU}:{sU+3}], s{sUO} offen offset:{it*1024}"], "u") for it in range(4)]
    def emitg(G):
        for ins, tg in G:
            for x in ins: a(x)
            a.vm_issue(tg)
    a(f"s_mul_i32 s{sKO}, s{sCH}, {KREV_PITCH}\ns_add_u32 s{sKO}, s{sKO}, 16")
    a(f"s_lshl_b32 s{sUO}, s{sCH}, 12")
    emitg(uload()); emitg(kdma(0))
    stamp(a, stamps)
    a(f"v_and_b32 v{T}, 3, v{L_}")
    a(f"v_mul_u32_u24 v{VA}, {KC_PITCH}, v{T}")
    a(f"v_lshrrev_b32 v{T}, 5, v{L_}")
    a(f"v_lshlrev_b32 v{T}, 5, v{T}")
    a(f"v_sub_u32 v{VA}, v{VA}, v{T}")
    a(f"v_bfe_u32 v{T+1}, v{L_}, 4, 1")
    a(f"v_lshlrev_b32 v{T+1}, 4, v{T+1}")
    a(f"v_add_u32 v{VA}, v{VA}, v{T+1}")
    a(f"v_and_b32 v{T+2}, 12, v{L_}")
    a(f"v_lshlrev_b32 v{T+2}, 1, v{T+2}")
    a(f"v_sub_u32 v{VA}, v{VA}, v{T+2}")
    a(f"v_add_u32 v{VA}, {4096 - 64*63 + 64*7}, v{VA}")
    a(f"v_add_u32 v{VA}, s{sLB}, v{VA}")
    a(f"v_and_b32 v{T+2}, 15, v{L_}")
    a(f"v_lshlrev_b32 v{VB}, 5, v{T+2}")
    a(f"v_sub_u32 v{VB}, v{VB}, v{T}")
    a(f"v_add_u32 v{VB}, v{VB}, v{T+1}")
    a(f"v_add_u32 v{VB}, {U_OFF + 512}, v{VB}")
    a(f"v_add_u32 v{VB}, s{sLB}, v{VB}")
    a(f"v_add_u32 v{VUO}, {U_OFF + 512}, v{VKD}")
    a(f"v_add_u32 v{VUO}, s{sLB}, v{VUO}")
    a(f"v_subrev_u32 v{VUZ}, 512, v{VUO}")
    for i in range(4): a(f"v_mov_b32 v{PKR+i}, 0")
    a("s_mov_b32 exec_hi, 0")
    a(f"ds_write_b128 v{VUZ}, {vr(PKR,4)}")
    a("s_mov_b64 exec, -1")
    a(f"v_lshlrev_b32 v{VYO}, 5, v{T+2}")
    a(f"v_lshrrev_b32 v{T+3}, 4, v{L_}")
    a(f"v_lshlrev_b32 v{T+3}, 3, v{T+3}")
    a(f"v_add_u32 v{VYO}, v{VYO}, v{T+3}")
    for chn in range(3):
        buf = chn & 1
        a.wait(vm=lambda t: t in ("u", "k"))
        stamp(a, stamps)
        for it in range(4):
            a(f"ds_write_b128 v{VUO}, {vr(UPF+4*it,4)} offset:{it*1024}")
        a(f"s_lshl_b32 s{sT1}, s{sCH}, 12")
        pf = []
        if chn < 2:
            a(f"s_add_u32 s{sCH}, s{sCH}, s{sSTR}")
            a(f"s_mul_i32 s{sKO}, s{sCH}, {KREV_PITCH}\ns_add_u32 s{sKO}, s{sKO}, 16")
            a(f"s_lshl_b32 s{sUO}, s{sCH}, 12")
            a(f"s_cmp_gt_u32 s{sN}, {chn+1}\ns_cselect_b32 s{sK+2}, s{sK+2}, 0\ns_cselect_b32 s{sU+2}, s{sU+2}, 0")
            pf = kdma(buf ^ 1)
        a("s_waitcnt lgkmcnt(0)")
        a.lg = []
        VAc, VBc = T, T+1
        a(f"v_add_u32 v{VAc}, {buf*KC_BYTES}, v{VA}")
        a(f"v_mov_b32 v{VBc}, v{VB}")
        def reads(rho, fb):
            r = []
            for x in range(8):
                r.append((f"ds_read_b64 {vr(FA+32*fb+4*x,2)}, v{VAc} offset:{512*(7-x)}", f"A{x}"))
                r.append((f"ds_read_b64 {vr(FA+32*fb+4*x+2,2)}, v{VAc} offset:{512*(7-x)+8}", f"A{x}"))
                r.append((f"ds_read_b128 {vr(FBc+32*fb+4*x,4)}, v{VBc} offset:{512*x}", f"B{x}"))
            return r
        for ins, tg in reads(0, 0)[:12]:
            a(ins); a.lg_issue(f"{tg}@0")
        pend = reads(0, 0)[12:]
        if chn < 2:
            upf = uload()
        else:
            upf = []
        pfq = upf + pf
        for rho in range(8):
            fb = rho & 1
            mf = [(n, x) for n in range(8) for x in range(n+1)]
            mf.sort(key=lambda p: (max(p[1], p[0]-p[1]), p[0]))
            nxt = reads(rho+1, fb ^ 1) if rho < 7 else []
            queue = [(ins, f"{tg}@{rho}") for ins, tg in pend]
            nq = [(ins, f"{tg}@{rho+1}") for ins, tg in nxt[:12]]
            pend = nxt[12:]
            qi = 0
            allq = queue + ([("ADDR", None)] if rho < 7 else []) + nq
            def issue_one():
                nonlocal qi
                ins, tg = allq[qi]; qi += 1
                if ins == "ADDR":
                    a(f"v_subrev_u32 v{VAc}, 64, v{VAc}\nv_subrev_u32 v{VBc}, 64, v{VBc}")
                else:
                    if len(a.lg) >= 15: a.wait(lg=lambda t: t == a.lg[0])
                    a(ins); a.lg_issue(tg)
            for mi, (n, x) in enumerate(mf):
                need = {f"A{x}@{rho}", f"B{n-x}@{rho}"}
                while any((tg in need) for _, tg in allq[qi:]): issue_one()
                a.wait(lg=lambda t: t in need)
                src = "0" if (rho == 0 and first_use(mf, mi)) else vr(ACCc+4*n,4)
                a(f"v_mfma_f32_16x16x32_bf16 {vr(ACCc+4*n,4)}, {vr(FA+32*fb+4*x,4)}, {vr(FBc+32*fb+4*(n-x),4)}, {src}")
                if qi < len(allq) and len(a.lg) < 15: issue_one()
                elif mi >= 26 and pfq and mi % 3 == 0:
                    ins, tg = pfq.pop(0)
                    for y in ins: a(y)
                    a.vm_issue(tg)
            while qi < len(allq): issue_one()
        for ins, tg in pfq:
            for y in ins: a(y)
            a.vm_issue(tg)
        stamp(a, stamps)
        a("s_nop 7")
        for n in range(8):
            p = PKR + 2*(n & 1)
            a(f"v_cvt_pk_bf16_f32 v{p}, v{ACCc+4*n}, v{ACCc+4*n+1}")
            a(f"v_cvt_pk_bf16_f32 v{p+1}, v{ACCc+4*n+2}, v{ACCc+4*n+3}")
            a(f"buffer_store_dwordx2 {vr(p,2)}, v{VYO}, s[{sY}:{sY+3}], s{sT1} offen offset:{512*n} {PFLAGS}"); a.vm_issue("y")
            a("s_nop 0")
        if chn < 2:
            a(f"s_cmp_gt_u32 s{sN}, {chn+1}")
            a(f"s_cbranch_scc0 {name}_convdone")
    a.label(f"{name}_convdone")
    a("s_waitcnt vmcnt(0)")

def first_use(mf, mi):
    n = mf[mi][0]
    return all(mf[j][0] != n for j in range(mi))

def gen_g(a, name, stamps):
    L_ = V_LANE
    X = 0
    W = 40
    WR = 112
    T = 150
    a(f"s_load_dwordx2 s[8:9], s[0:1], {KA_U}")
    a(f"s_load_dwordx2 s[12:13], s[0:1], {KA_GW}")
    a("s_sub_u32 s50, s61, 128\ns_lshl_b32 s50, s50, 5")
    a(f"v_and_b32 v{T}, 7, v{L_}")
    a(f"v_lshlrev_b32 v{T}, 4, v{T}")
    a(f"v_lshrrev_b32 v{T+1}, 3, v{L_}")
    a(f"v_mul_u32_u24 v{T+2}, 1152, v{T+1}")
    a(f"v_add_u32 v{T+2}, v{T+2}, v{T}")
    a("s_waitcnt lgkmcnt(0)")
    a(f"s_mov_b32 s10, {X_BYTES}\ns_mov_b32 s11, 0x20000\ns_mov_b32 s14, 1152\ns_mov_b32 s15, 0x20000")
    a(f"s_add_u32 s16, s4, {WS_G}\ns_addc_u32 s17, s5, 0\ns_mov_b32 s18, 8192\ns_mov_b32 s19, 0x20000")
    for i in range(9):
        a(f"buffer_load_dwordx4 {vr(WR+4*i,4)}, v{T}, s[12:15], 0 offen offset:{i*128}")
    a(f"s_mul_i32 s52, s50, 1152")
    XB = [0, 200]
    def gl(ps):
        for i in range(9):
            a(f"buffer_load_dwordx4 {vr(XB[ps&1]+4*i,4)}, v{T+2}, s[8:11], s52 offen offset:{i*128}")
        a(f"s_add_u32 s52, s52, {8*1152}")
    gl(0); gl(1)
    for ps in range(4):
        X = XB[ps & 1]
        if ps == 0:
            a("s_waitcnt vmcnt(18)")
            for i in range(36):
                a(f"v_lshlrev_b32 v{W+2*i}, 16, v{WR+i}")
                a(f"v_and_b32 v{W+2*i+1}, 0xffff0000, v{WR+i}")
        a(f"s_waitcnt vmcnt({9 if ps == 0 else (10 if ps < 3 else 1)})")
        a(f"v_mov_b32 v{T+3}, 0\nv_mov_b32 v{T+4}, 0")
        for i in range(36):
            a(f"v_lshlrev_b32 v{T+5}, 16, v{X+i}")
            a(f"v_and_b32 v{T+6}, 0xffff0000, v{X+i}")
            a(f"v_mul_f32 v{T+5}, v{T+5}, v{W+2*i}")
            a(f"v_mul_f32 v{T+6}, v{T+6}, v{W+2*i+1}")
            a(f"v_cvt_pk_bf16_f32 v{T+7}, v{T+5}, v{T+6}")
            a(f"v_lshlrev_b32 v{T+5}, 16, v{T+7}")
            a(f"v_and_b32 v{T+6}, 0xffff0000, v{T+7}")
            a(f"v_add_f32 v{T+3}, v{T+3}, v{T+5}")
            a(f"v_add_f32 v{T+4}, v{T+4}, v{T+6}")
        a(f"v_add_f32 v{T+3}, v{T+3}, v{T+4}")
        a("s_nop 1")
        a(f"v_add_f32_dpp v{T+3}, v{T+3}, v{T+3} quad_perm:[1,0,3,2] row_mask:0xf bank_mask:0xf")
        a("s_nop 1")
        a(f"v_add_f32_dpp v{T+3}, v{T+3}, v{T+3} quad_perm:[2,3,0,1] row_mask:0xf bank_mask:0xf")
        a("s_nop 1")
        a(f"v_add_f32_dpp v{T+3}, v{T+3}, v{T+3} row_half_mirror row_mask:0xf bank_mask:0xf")
        a(f"v_cvt_pk_bf16_f32 v{T+3}, v{T+3}, v{T+3}")
        a(f"v_and_b32 v{T+3}, 0xffff0000, v{T+3}")
        a(f"v_mul_f32 v{T+3}, 0x{f2u(-1.4426950408889634):08x}, v{T+3}")
        a(f"v_exp_f32 v{T+3}, v{T+3}")
        a("s_nop 0")
        a(f"v_add_f32 v{T+3}, 1.0, v{T+3}")
        a(f"v_rcp_f32 v{T+3}, v{T+3}")
        a("s_nop 0")
        a(f"v_cvt_pk_bf16_f32 v{T+3}, v{T+3}, v{T+3}")
        a(f"v_and_b32 v{T+3}, 0xffff0000, v{T+3}")
        a(f"v_lshlrev_b32 v{T+4}, 2, v{T+1}")
        a(f"s_lshl_b32 s53, s50, 2\ns_add_u32 s53, s53, {ps*32}")
        a(f"v_cmp_eq_u32 vcc, 0, v{T}")
        a("s_and_saveexec_b64 s[54:55], vcc")
        a(f"buffer_store_dword v{T+3}, v{T+4}, s[16:19], s53 offen")
        a("s_mov_b64 exec, s[54:55]")
        if ps < 2: gl(ps + 2)
    a("s_waitcnt vmcnt(0)")

def gen_k2(a, name, stamps=False):
    import kgen
    NST[0] = 0
    a(f".globl {name}\n.p2align 8\n.type {name},@function")
    a.label(name)
    a("s_cmp_ge_u32 s2, 256")
    a(f"s_cbranch_scc1 {name}_end")
    a(f"s_load_dwordx2 s[4:5], s[0:1], {KA_WS}")
    stamp_init(a, stamps); stamp_init2(a, stamps)
    stamp(a, stamps)
    a(f"v_and_b32 v{V_LANE}, 63, v0")
    a(f"v_lshrrev_b32 v{V_T}, 6, v0")
    a("s_nop 0")
    a(f"v_readfirstlane_b32 s{S_WAVE}, v{V_T}")
    a("s_and_b32 s3, s2, 7\ns_lshr_b32 s62, s2, 3")
    a("s_cmp_ge_u32 s62, 30")
    a(f"s_cbranch_scc1 {name}_g")
    a("s_cmp_ge_u32 s62, 24")
    a(f"s_cbranch_scc1 {name}_conv")
    gen_gemm2(a, name, stamps)
    a(f"s_branch {name}_fin")
    a.label(f"{name}_g")
    a.vm = []; a.lg = []
    a("s_lshl_b32 s60, s3, 1\ns_add_u32 s60, s60, s62\ns_sub_u32 s60, s60, 30")
    a(f"s_and_b32 s31, s{S_WAVE}, 1\ns_lshr_b32 s32, s{S_WAVE}, 1")
    a(f"s_lshl_b32 s34, s{S_WAVE}, 14\ns_xor_b32 s35, s34, 16384")
    a(f"s_lshl_b32 s33, s60, 2\ns_add_u32 s33, s33, s32\ns_add_u32 s33, s33, 512")
    kg = kgen.KGen(a, 0, 33, 31, 34, 35, V_LANE, 40, "kmap_table")
    kg.sloads()
    a("s_add_u32 s36, s33, 2")
    a("s_waitcnt lgkmcnt(0)")
    kg.issue_params(s_ch=33, pb=144)
    kg.issue_params(s_ch=36, pb=150)
    for grp in kg.map_groups():
        for y in grp: a(y)
    kg.compute(wait_params=8, wait_map=0, pb=144)
    a("s_barrier")
    a("s_mov_b32 s33, s36")
    kg.compute(wait_params=None, wait_map=63, pb=150)
    a("s_waitcnt vmcnt(0) lgkmcnt(0)")
    a(f"s_lshl_b32 s21, s60, 2\ns_add_u32 s21, s21, s{S_WAVE}\ns_add_u32 s21, s21, 512\ns_mov_b32 s28, 0\ns_mov_b32 s29, 1")
    a("s_barrier")
    a(f"s_branch {name}_conv2")
    a.label(f"{name}_conv")
    a(f"s_mul_i32 s50, s3, 6\ns_add_u32 s50, s50, s62\ns_sub_u32 s50, s50, 24\ns_lshl_b32 s50, s50, 2\ns_add_u32 s21, s50, s{S_WAVE}")
    a("s_movk_i32 s28, 192\ns_cmp_lt_u32 s21, 128\ns_cselect_b32 s29, 3, 2\ns_mov_b32 s61, s21")
    a("s_waitcnt lgkmcnt(0)")
    a.label(f"{name}_conv2")
    a.vm = []; a.lg = []
    NST[0] = 8
    gen_conv(a, name, stamps)
    a("s_cmp_eq_u32 s29, 2")
    a(f"s_cbranch_scc0 {name}_fin")
    gen_g(a, name, stamps)
    a.label(f"{name}_fin")
    NST[0] = 7
    stamp(a, stamps)
    NST[0] = 16
    if stamps: stamp_store2(a, 1)
    a.label(f"{name}_end")
    a("s_endpgm")
```

```python
from asmlib import *
from layout import *
import k1
from k1 import stamp, stamp_store2, stamp_init, stamp_init2, NST, f2u
V_LANE = 100
def gen_k3(a, name, stamps=False):
    NST[0] = 0
    k1.V_LANE_SAVE = k1.V_LANE
    a(f".globl {name}\n.p2align 8\n.type {name},@function")
    a.label(name)
    a("s_cmp_ge_u32 s2, 288")
    a(f"s_cbranch_scc1 {name}_end")
    a(f"s_load_dwordx2 s[4:5], s[0:1], {KA_WS}")
    a(f"s_load_dwordx2 s[8:9], s[0:1], {KA_U}")
    a(f"s_load_dwordx2 s[12:13], s[0:1], {KA_DSK}")
    a(f"s_load_dwordx2 s[16:17], s[0:1], {KA_OUT}")
    stamp_init(a, stamps); stamp_init2(a, stamps)
    stamp(a, stamps)
    L_ = V_LANE
    a(f"v_and_b32 v{L_}, 63, v0")
    a(f"v_lshrrev_b32 v1, 6, v0")
    a("s_nop 0")
    a(f"v_readfirstlane_b32 s20, v1")
    a("s_lshl_b32 s21, s2, 2\ns_add_u32 s21, s21, s20")
    a("s_mul_i32 s22, s21, 3641\ns_lshr_b32 s22, s22, 16")
    a("s_mul_i32 s23, s22, 18\ns_sub_u32 s23, s21, s23")
    a(f"v_lshlrev_b32 v97, 4, v{L_}")
    a(f"v_and_b32 v98, 31, v{L_}")
    a(f"v_lshrrev_b32 v99, 5, v{L_}")
    a("v_lshlrev_b32 v101, 16, v99")
    a("v_lshlrev_b32 v102, 1, v98")
    a("v_add_u32 v101, v101, v102")
    a("s_lshl_b32 s24, s23, 17\ns_lshl_b32 s25, s22, 6\ns_add_u32 s24, s24, s25")
    a("v_mul_u32_u24 v103, 1152, v98")
    a("v_lshlrev_b32 v102, 5, v99")
    a("v_add_u32 v103, v103, v102")
    a(f"s_mul_i32 s26, s22, {32*1152}\ns_lshl_b32 s27, s23, 6\ns_add_u32 s26, s26, s27")
    a("v_lshlrev_b32 v104, 2, v98\ns_lshl_b32 s28, s22, 7")
    a("s_waitcnt lgkmcnt(0)")
    a(f"s_add_u32 s32, s4, {WS_PART}\ns_addc_u32 s33, s5, 0\ns_mov_b32 s34, {PART_BYTES}\ns_mov_b32 s35, 0x20000")
    a(f"s_add_u32 s36, s4, {WS_YT}\ns_addc_u32 s37, s5, 0\ns_mov_b32 s38, {UT_BYTES}\ns_mov_b32 s39, 0x20000")
    a(f"s_add_u32 s40, s4, {WS_G}\ns_addc_u32 s41, s5, 0\ns_mov_b32 s42, 8192\ns_mov_b32 s43, 0x20000")
    a(f"s_mov_b32 s10, {X_BYTES}\ns_mov_b32 s11, 0x20000\ns_mov_b32 s14, 1152\ns_mov_b32 s15, 0x20000\ns_mov_b32 s18, {X_BYTES}\ns_mov_b32 s19, 0x20000")
    a("s_lshl_b32 s29, s21, 12")
    for sk in range(4):
        if sk: a(f"s_add_u32 s29, s29, {64*18*4096}")
        for j in range(4):
            a(f"buffer_load_dwordx4 {vr(16*sk+4*j,4)}, v97, s[32:35], s29 offen offset:{j*1024}")
    for k in range(16):
        a(f"s_add_u32 s30, s24, {k*4096}")
        a(f"buffer_load_ushort v{64+k}, v101, s[36:39], s30 offen")
    a("buffer_load_dwordx4 v[80:83], v103, s[8:11], s26 offen")
    a("buffer_load_dwordx4 v[84:87], v103, s[8:11], s26 offen offset:16")
    a("buffer_load_dwordx4 v[88:91], v102, s[12:15], s27 offen")
    a("buffer_load_dwordx4 v[92:95], v102, s[12:15], s27 offen offset:16")
    a("buffer_load_dword v96, v104, s[40:43], s28 offen")
    stamp(a, stamps)
    a("s_waitcnt vmcnt(21)")
    for k in range(16):
        a(f"v_add_f32 v{k}, v{k}, v{16+k}")
        a(f"v_add_f32 v{32+k}, v{32+k}, v{48+k}")
    for k in range(16):
        a(f"v_add_f32 v{k}, v{k}, v{32+k}")
    a("s_waitcnt vmcnt(0)")
    a("v_sub_f32 v105, 1.0, v96")
    a("v_cvt_pk_bf16_f32 v105, v105, v105\nv_and_b32 v105, 0xffff0000, v105")
    for k in range(0, 16, 2):
        q = k // 2
        a(f"v_lshlrev_b32 v106, 16, v{80+q}\nv_and_b32 v107, 0xffff0000, v{80+q}")
        a(f"v_lshlrev_b32 v108, 16, v{88+q}\nv_and_b32 v109, 0xffff0000, v{88+q}")
        a("v_mul_f32 v106, v106, v108\nv_mul_f32 v107, v107, v109")
        a("v_cvt_pk_bf16_f32 v106, v106, v107")
        a("v_and_b32 v107, 0xffff0000, v106\nv_lshlrev_b32 v106, 16, v106")
        a(f"v_lshlrev_b32 v108, 16, v{64+k}\nv_lshlrev_b32 v109, 16, v{64+k+1}")
        a("v_add_f32 v106, v106, v108\nv_add_f32 v107, v107, v109")
        a("v_cvt_pk_bf16_f32 v106, v106, v107")
        a("v_and_b32 v107, 0xffff0000, v106\nv_lshlrev_b32 v106, 16, v106")
        a("v_mul_f32 v106, v106, v96\nv_mul_f32 v107, v107, v96")
        a("v_cvt_pk_bf16_f32 v106, v106, v107")
        a("v_and_b32 v107, 0xffff0000, v106\nv_lshlrev_b32 v106, 16, v106")
        a(f"v_cvt_pk_bf16_f32 v108, v{k}, v{k+1}")
        a("v_and_b32 v109, 0xffff0000, v108\nv_lshlrev_b32 v108, 16, v108")
        a("v_mul_f32 v108, v108, v105\nv_mul_f32 v109, v109, v105")
        a("v_cvt_pk_bf16_f32 v108, v108, v109")
        a("v_and_b32 v109, 0xffff0000, v108\nv_lshlrev_b32 v108, 16, v108")
        a("v_add_f32 v106, v106, v108\nv_add_f32 v107, v107, v109")
        a(f"v_cvt_pk_bf16_f32 v{16+q}, v106, v107")
    a("buffer_store_dwordx4 v[16:19], v103, s[16:19], s26 offen")
    a("buffer_store_dwordx4 v[20:23], v103, s[16:19], s26 offen offset:16")
    a("s_waitcnt vmcnt(0)")
    stamp(a, stamps)
    if stamps: stamp_store2(a, 2, vlane=V_LANE, vt=110, swave=20)
    a.label(f"{name}_end")
    a("s_endpgm")
assert all((t*3641)>>16 == t//18 for t in range(1152))
```

```python
from asmlib import *
from layout import *
import struct, math
def f2u(x): return struct.unpack("<I", struct.pack("<f", x))[0]
import os
SFLAGS = os.environ.get('HFLAGS', 'sc1')
LOG2E = 1.4426950408889634
INV2PI = 0.15915494309189535

HI = list(range(8)) + [256, 258, 260, 262] + [512, 516, 768, 772] + [1024, 1280, 1536, 1792, 2048]
PITCH = 272
A_BYTES = 21 * PITCH
TB_OFF = 5760
F_OFF = TB_OFF + 32 * PITCH
KG_LDS = F_OFF + 24*32*2 + 64
KG_REGION = 16384

def bf16_rne_int(l):
    import numpy as np
    f = np.float32(l); u = f.view(np.uint32)
    u = (int(u) + 0x7fff + ((int(u) >> 16) & 1)) & 0xffff0000
    return int(np.uint32(u).view(np.float32))

def kmap_table():
    out = []
    ZERO = 21*32
    for y0 in range(2080):
        l = 2048 - y0
        if l < 0 or l > 2047:
            out.append(ZERO*2); continue
        p = bf16_rne_int(l)
        if p < 256: hi, lo = p & 7, p >> 3
        elif p < 512: h = p - 256; hi, lo = 8 + ((h & 7) >> 1), h >> 3
        elif p < 1024: h = p - 512; hi, lo = 12 + 2*(h >> 8) + ((h & 7) >> 2), (h & 255) >> 3
        elif p < 2048: h = p - 1024; hi, lo = 16 + (h >> 8), (h & 255) >> 3
        else: hi, lo = 20, 0
        assert HI[hi] + 8*lo == p
        out.append((hi*32 + lo)*2)
    return out

def emit_kmap(a, label):
    t = kmap_table()
    a(".p2align 4")
    a.label(label)
    for i in range(0, 2080, 8):
        a(".short " + ", ".join(str(x) for x in t[i:i+8]))

class KGen:
    def __init__(self, a, VB, s_ch, s_ps, s_lds, s_plds, v_lane, S, label_map):
        self.a, self.VB, self.s_ch, self.s_ps, self.s_lds, self.s_plds, self.v_lane, self.S, self.label_map = a, VB, s_ch, s_ps, s_lds, s_plds, v_lane, S, label_map
    def sloads(self):
        a, S = self.a, self.S
        a(f"s_load_dwordx8 s[{S}:{S+7}], s[0:1], {KA_LAR}")
        a(f"s_load_dwordx2 s[{S+8}:{S+9}], s[0:1], {KA_LDT}")
        sM = S + 10
        a(f"s_getpc_b64 s[{sM}:{sM+1}]")
        lab = a.newlabel("kg_pc")
        a.label(lab)
        a(f"s_add_u32 s{sM}, s{sM}, {self.label_map}-{lab}")
        a(f"s_addc_u32 s{sM+1}, s{sM+1}, 0")
    def issue_params(self, s_ch=None, pb=0):
        a, S, VB, s_ps, v_lane = self.a, self.S, self.VB, self.s_ps, self.v_lane
        s_ch = self.s_ch if s_ch is None else s_ch
        v = lambda i: VB + i
        sP, sL, sR, sT = S, S+8, S+12, S+16
        OFF = v(5); T2 = v(7)
        a(f"s_lshl_b32 s{sT}, s{s_ch}, 8\ns_lshl_b32 s{sT+1}, s{s_ps}, 7\ns_add_u32 s{sT}, s{sT}, s{sT+1}")
        a(f"v_lshlrev_b32 v{OFF}, 1, v{v_lane}")
        a(f"s_mov_b32 s{sR+2}, {576*128*2}\ns_mov_b32 s{sR+3}, 0x20000")
        for k in range(4):
            a(f"s_mov_b32 s{sR}, s{sP+2*k}\ns_mov_b32 s{sR+1}, s{sP+2*k+1}")
            a(f"buffer_load_ushort v{pb+k}, v{OFF}, s[{sR}:{sR+3}], s{sT} offen")
        a(f"s_mov_b32 s{sR}, s{sL}\ns_mov_b32 s{sR+1}, s{sL+1}\ns_mov_b32 s{sR+2}, {576*2}")
        a(f"s_lshl_b32 s{sT+1}, s{s_ch}, 1")
        a(f"v_mov_b32 v{T2}, 0")
        a(f"buffer_load_ushort v{pb+4}, v{T2}, s[{sR}:{sR+3}], s{sT+1} offen")
    def map_groups(self):
        S, VB, s_ps, v_lane = self.S, self.VB, self.s_ps, self.v_lane
        v = lambda i: VB + i
        sM, sT = S+10, S+16
        MAPO = v(6); T2 = v(8); MAP = v(72)
        G = [[f"s_lshl_b32 s{sT+1}, s{s_ps}, 11", f"v_lshlrev_b32 v{MAPO}, 4, v{v_lane}", f"v_add_u32 v{MAPO}, s{sT+1}, v{MAPO}",
              f"global_load_dwordx4 {vr(MAP,4)}, v{MAPO}, s[{sM}:{sM+1}]"],
             [f"global_load_dwordx4 {vr(MAP+4,4)}, v{MAPO}, s[{sM}:{sM+1}] offset:1024"],
             [f"v_and_b32 v{T2}, 3, v{v_lane}", f"v_lshlrev_b32 v{T2}, 4, v{T2}", f"v_add_u32 v{T2}, 4096, v{T2}",
              f"global_load_dwordx4 {vr(MAP+8,4)}, v{T2}, s[{sM}:{sM+1}]"]]
        return G
    def compute(self, wait_params, wait_map, pb=0, pre=(), extra=(), post=(), st=None):
        a, S, VB, s_ch, s_ps, s_lds, s_plds, v_lane = self.a, self.S, self.VB, self.s_ch, self.s_ps, self.s_lds, self.s_plds, self.v_lane
        sR = S + 12; sT = S + 16
        v = lambda i: VB + i
        LAR, AIM, CR, CI, LDT = pb, pb+1, pb+2, pb+3, pb+4
        MAPO = v(6)
        DT = v(10); WA = v(11); RA = v(13); RB = v(14)
        ARE, AIR = v(15), v(16)
        Z1, Z2, Z4, Z8, Z256, Z16 = [v(18 + 2*i) for i in range(6)]
        C0 = v(30)
        CH = [v(32 + 6*i) for i in range(4)]
        G2 = v(56); TH = v(58); EE = v(59); T1 = v(60); T2 = v(61)
        MAP = v(72); OUT = v(84)
        ACC = v(96)
        FR = v(112)
        extra = list(extra)
        def fconst(p):
            return {1: "1.0", 2: "2.0", 4: "4.0"}.get(p, f"0x{f2u(float(p)):08x}")
        a(f"v_lshlrev_b32 v{WA}, 2, v{v_lane}")
        a(f"v_add_u32 v{WA}, s{s_lds}, v{WA}")
        a(f"v_and_b32 v{RA}, 31, v{v_lane}")
        a(f"v_mul_u32_u24 v{RA}, {PITCH}, v{RA}")
        a(f"v_lshrrev_b32 v{RB}, 5, v{v_lane}")
        a(f"v_lshlrev_b32 v{RB}, 4, v{RB}")
        a(f"v_add_u32 v{RA}, v{RA}, v{RB}")
        a(f"v_add_u32 v{RA}, s{s_lds}, v{RA}")
        if wait_params is not None: a(f"s_waitcnt vmcnt({wait_params})")
        if st: st()
        for grp in pre:
            for y in grp: a(y)
        for x in [f"v_lshlrev_b32 v{LDT}, 16, v{LDT}", f"v_lshlrev_b32 v{ARE}, 16, v{LAR}", f"v_mul_f32 v{DT}, 0x{f2u(LOG2E):08x}, v{LDT}",
                  f"v_mul_f32 v{ARE}, 0x{f2u(LOG2E):08x}, v{ARE}", f"v_exp_f32 v{DT}, v{DT}", f"v_exp_f32 v{ARE}, v{ARE}",
                  f"v_lshlrev_b32 v{AIR}, 16, v{AIM}", f"v_cvt_pk_bf16_f32 v{DT}, v{DT}, v{ARE}",
                  f"v_and_b32 v{ARE}, 0xffff0000, v{DT}", f"v_lshlrev_b32 v{DT}, 16, v{DT}",
                  f"v_mul_f32 v{AIR}, v{AIR}, v{DT}", f"v_mul_f32 v{ARE}, v{ARE}, v{DT}", f"v_mul_f32 v{AIR}, 0x{f2u(INV2PI):08x}, v{AIR}",
                  f"v_mul_f32 v{ARE}, 0x{f2u(-LOG2E):08x}, v{ARE}",
                  f"v_lshlrev_b32 v{C0}, 16, v{CR}", f"v_lshlrev_b32 v{C0+1}, 16, v{CI}", f"v_add_f32 v{TH}, v{DT}, v{DT}",
                  f"v_mul_f32 v{C0}, v{C0}, v{TH}", f"v_mul_f32 v{C0+1}, v{C0+1}, v{TH}"]: a(x)
        def cmul(D, A_, B_, T):
            return [f"v_mul_f32 v{T}, v{A_}, v{B_}", f"v_mul_f32 v{T+1}, v{A_}, v{B_+1}",
                    f"v_fma_f32 v{D}, -v{A_+1}, v{B_+1}, v{T}", f"v_fma_f32 v{D+1}, v{A_+1}, v{B_}, v{T+1}"]
        def putA(row, X, PK):
            return [f"v_cvt_pk_bf16_f32 v{PK}, v{X}, -v{X+1}", f"ds_write_b32 v{WA}, v{PK} offset:{row*PITCH}"]
        def putB(row, X, PK):
            return [f"v_cvt_pk_bf16_f32 v{PK}, v{X}, v{X+1}", f"ds_write_b32 v{WA}, v{PK} offset:{TB_OFF + row*PITCH}"]
        def merge(streams):
            out = []; idx = [0]*len(streams)
            while any(idx[i] < len(streams[i]) for i in range(len(streams))):
                for i in range(len(streams)):
                    if idx[i] < len(streams[i]):
                        out.append(streams[i][idx[i]]); idx[i] += 1
            return out
        zs = []
        for zi, (Z, p) in enumerate(((Z1, 1), (Z8, 8), (Z256, 256))):
            e = CH[zi]; t = e + 1
            zs.append([f"v_mul_f32 v{e}, {fconst(p)}, v{ARE}", f"v_mul_f32 v{t}, {fconst(p)}, v{AIR}", f"v_exp_f32 v{e}, v{e}", f"v_fract_f32 v{t}, v{t}",
                       f"v_cos_f32 v{Z}, v{t}", f"v_sin_f32 v{Z+1}, v{t}", None, f"v_mul_f32 v{Z}, v{Z}, v{e}", f"v_mul_f32 v{Z+1}, v{Z+1}, v{e}"])
        for x in merge(zs):
            if x: a(x)
        X0, T0, P0 = CH[0], CH[0]+2, CH[0]+4
        X1, T1_, P1 = CH[1], CH[1]+2, CH[1]+4
        X2, T2_, P2 = CH[2], CH[2]+2, CH[2]+4
        X3, T3_, P3 = CH[3], CH[3]+2, CH[3]+4
        for x in merge([cmul(Z2, Z1, Z1, T1_), cmul(Z16, Z8, Z8, T2_)]): a(x)
        for x in cmul(Z4, Z2, Z2, T1_): a(x)
        c0 = putA(0, C0, P0) + cmul(X0, C0, Z1, T0) + putA(1, X0, P0)
        for h in range(2, 8): c0 += cmul(X0, X0, Z1, T0) + putA(h, X0, P0)
        c1 = cmul(G2, C0, Z256, T1_) + putA(8, G2, P1)
        c1 += cmul(X1, G2, Z2, T1_) + putA(9, X1, P1)
        c1 += cmul(X1, X1, Z2, T1_) + putA(10, X1, P1)
        c1 += cmul(X1, X1, Z2, T1_) + putA(11, X1, P1)
        c1 += cmul(G2, G2, Z256, T1_) + putA(12, G2, P1)
        c1 += cmul(X1, G2, Z4, T1_) + putA(13, X1, P1)
        c1 += cmul(G2, G2, Z256, T1_) + putA(14, G2, P1)
        c1 += cmul(X1, G2, Z4, T1_) + putA(15, X1, P1)
        for r in range(16, 21): c1 += cmul(G2, G2, Z256, T1_) + putA(r, G2, P1)
        c2 = [f"v_mov_b32 v{X2}, 1.0", f"v_mov_b32 v{X2+1}, 0"] + putB(0, X2, P2)
        c2 += putB(2, Z16, P2) + cmul(X2, Z16, Z16, T2_) + putB(4, X2, P2)
        for j in range(6, 32, 2): c2 += cmul(X2, X2, Z16, T2_) + putB(j, X2, P2)
        c3 = putB(1, Z8, P3) + cmul(X3, Z8, Z16, T3_) + putB(3, X3, P3)
        for j in range(5, 32, 2): c3 += cmul(X3, X3, Z16, T3_) + putB(j, X3, P3)
        body = merge([c0, c1, c2, c3])
        take = list(extra)
        step = len(body) // (len(take) + 1) if take else 0
        for i, x in enumerate(body):
            a(x)
            if take and step and (i + 1) % step == 0:
                for y in take.pop(0): a(y)
        for grp in take:
            for y in grp: a(y)
        for grp in post:
            for y in grp: a(y)
        a("s_waitcnt lgkmcnt(0)")
        def rd(ks):
            b = ks & 3
            a(f"ds_read_b128 {vr(FR+8*b,4)}, v{RA} offset:{ks*32}")
            a(f"ds_read_b128 {vr(FR+8*b+4,4)}, v{RA} offset:{TB_OFF + ks*32}")
        for ks in range(4): rd(ks)
        for ks in range(8):
            left = min(3, 7 - ks)
            a(f"s_waitcnt lgkmcnt({2*left})")
            b = ks & 3
            src = "0" if ks == 0 else vr(ACC,16)
            a(f"v_mfma_f32_32x32x16_bf16 {vr(ACC,16)}, {vr(FR+8*b,4)}, {vr(FR+8*b+4,4)}, {src}")
            if ks + 4 < 8:
                a("s_nop 3")
                rd(ks + 4)
        if st: st()
        a(f"v_lshlrev_b32 v{T1}, 4, v{v_lane}")
        a(f"v_add_u32 v{T2}, s{s_plds}, v{T1}")
        a(f"v_add_u32 v{T1}, s{s_lds}, v{T1}")
        a("s_nop 7\ns_nop 3")
        for j in range(3):
            a(f"ds_write_b128 v{T1}, {vr(ACC+4*j,4)} offset:{j*1024}")
        a("s_waitcnt lgkmcnt(0)")
        a("s_barrier")
        for j in range(3):
            a(f"ds_read_b128 {vr(FR+4*j,4)}, v{T2} offset:{j*1024}")
        a(f"v_and_b32 v{T1}, 31, v{v_lane}")
        a(f"v_lshlrev_b32 v{T1}, 1, v{T1}")
        a(f"v_lshrrev_b32 v{T2}, 5, v{v_lane}")
        a(f"v_lshlrev_b32 v{T2}, 8, v{T2}")
        a(f"v_add_u32 v{T1}, v{T1}, v{T2}")
        a(f"v_add_u32 v{T1}, s{s_lds}, v{T1}")
        a(f"v_mov_b32 v{TH}, s{s_lds}")
        a(f"s_add_u32 s{sR}, s4, {WS_KREV}\ns_addc_u32 s{sR+1}, s5, 0\ns_mov_b32 s{sR+2}, {KREV_BYTES}\ns_mov_b32 s{sR+3}, 0x20000")
        a(f"s_mul_i32 s{sT}, s{s_ch}, {KREV_PITCH}")
        a("s_waitcnt lgkmcnt(0)")
        for k in range(12): a(f"v_add_f32 v{ACC+k}, v{ACC+k}, v{FR+k}")
        for j in range(3):
            for i in range(0, 4, 2):
                pk = CH[(2*j + i//2) % 4]
                a(f"v_cvt_pk_bf16_f32 v{pk}, v{ACC+4*j+i}, v{ACC+4*j+i+1}")
                a(f"ds_write_b16 v{T1}, v{pk} offset:{F_OFF + (8*j+i)*64}")
                a(f"ds_write_b16_d16_hi v{T1}, v{pk} offset:{F_OFF + (8*j+i+1)*64}")
        a(f"v_mov_b32 v{EE}, 0")
        a(f"ds_write_b16 v{TH}, v{EE} offset:{F_OFF + 21*64}")
        a(f"s_waitcnt vmcnt({wait_map}) lgkmcnt(0)")
        ga = CH[0]
        for it in range(3):
            for i in range(4):
                a(f"v_add_u32_sdwa v{ga+8*it+2*i}, v{TH}, v{MAP+4*it+i} dst_sel:DWORD dst_unused:UNUSED_PAD src0_sel:DWORD src1_sel:WORD_0")
                a(f"v_add_u32_sdwa v{ga+8*it+2*i+1}, v{TH}, v{MAP+4*it+i} dst_sel:DWORD dst_unused:UNUSED_PAD src0_sel:DWORD src1_sel:WORD_1")
        for it in range(3):
            if it == 2: a("s_waitcnt lgkmcnt(7)")
            for i in range(4):
                if it == 1 and i == 3: a("s_waitcnt lgkmcnt(8)")
                a(f"ds_read_u16 v{ga+8*it+2*i}, v{ga+8*it+2*i} offset:{F_OFF}")
                a(f"ds_read_u16_d16_hi v{ga+8*it+2*i+1}, v{ga+8*it+2*i+1} offset:{F_OFF}")
        a("s_waitcnt lgkmcnt(0)")
        for it in range(3):
            for i in range(4):
                a(f"v_and_b32 v{ga+8*it+2*i+1}, 0xffff0000, v{ga+8*it+2*i+1}")
                a(f"v_or_b32 v{OUT+4*it+i}, v{ga+8*it+2*i}, v{ga+8*it+2*i+1}")
        for it in range(2):
            a(f"buffer_store_dwordx4 {vr(OUT+4*it,4)}, v{MAPO}, s[{sR}:{sR+3}], s{sT} offen offset:{it*1024} {SFLAGS}")
        a(f"v_lshlrev_b32 v{T1}, 4, v{v_lane}")
        a(f"v_cmp_gt_u32 vcc, 4, v{v_lane}")
        a(f"s_and_saveexec_b64 s[{sT+2}:{sT+3}], vcc")
        a(f"s_add_u32 s{sT}, s{sT}, 4096")
        a(f"buffer_store_dwordx4 {vr(OUT+8,4)}, v{T1}, s[{sR}:{sR+3}], s{sT} offen {SFLAGS}")
        a(f"s_mov_b64 exec, s[{sT+2}:{sT+3}]")


def ut_task(a, VB, s_task, s_lds, v_lane, S):
    sR = S; sT = S + 4
    v = lambda i: VB + i
    VO = v(0); RA = v(1); SO = v(2); T1 = v(3); T2 = v(4); D = v(8)
    a.c("---- uT task")
    a(f"s_mul_i32 s{sT}, s{s_task}, 57\ns_lshr_b32 s{sT}, s{sT}, 9")
    a(f"s_mul_i32 s{sT+1}, s{sT}, 9\ns_sub_u32 s{sT+1}, s{s_task}, s{sT+1}")
    a(f"s_mul_i32 s{sT+2}, s{sT}, {128*1152}")
    a(f"s_lshl_b32 s{sT+3}, s{sT+1}, 7")
    a(f"s_add_u32 s{sT+2}, s{sT+2}, s{sT+3}")
    a(f"v_lshrrev_b32 v{T1}, 3, v{v_lane}")
    a(f"v_mul_u32_u24 v{VO}, 1152, v{T1}")
    a(f"v_and_b32 v{T2}, 7, v{v_lane}")
    a(f"v_lshlrev_b32 v{T2}, 4, v{T2}")
    a(f"v_add_u32 v{VO}, v{VO}, v{T2}")
    for i in range(16):
        if i % 4 == 0:
            a(f"s_add_u32 m0, s{s_lds}, {(i//4)*4096}")
        a(f"s_add_u32 s{sT+3}, s{sT+2}, {i*9216 - (i%4)*1024}")
        a(f"buffer_load_dwordx4 v{VO}, s[8:11], s{sT+3} offen offset:{(i%4)*1024} lds")
    a(f"v_lshrrev_b32 v{T1}, 4, v{v_lane}")
    a(f"v_lshlrev_b32 v{T1}, 3, v{T1}")
    a(f"v_bfe_u32 v{T2}, v{v_lane}, 2, 2")
    a(f"v_add_u32 v{T1}, v{T1}, v{T2}")
    a(f"v_lshlrev_b32 v{T1}, 7, v{T1}")
    a(f"v_and_b32 v{T2}, 3, v{v_lane}")
    a(f"v_lshlrev_b32 v{T2}, 3, v{T2}")
    a(f"v_add_u32 v{RA}, v{T1}, v{T2}")
    a(f"v_add_u32 v{RA}, s{s_lds}, v{RA}")
    a(f"v_and_b32 v{T1}, 15, v{v_lane}")
    a(f"v_lshlrev_b32 v{T1}, 12, v{T1}")
    a(f"v_lshrrev_b32 v{T2}, 4, v{v_lane}")
    a(f"v_lshlrev_b32 v{T2}, 4, v{T2}")
    a(f"v_add_u32 v{SO}, v{T1}, v{T2}")
    a(f"s_add_u32 s{sR}, s4, {WS_UT}\ns_addc_u32 s{sR+1}, s5, 0\ns_mov_b32 s{sR+2}, {UT_BYTES}\ns_mov_b32 s{sR+3}, 0x20000")
    a(f"s_lshl_b32 s{sT+1}, s{sT+1}, 18\ns_lshl_b32 s{sT}, s{sT}, 8\ns_add_u32 s{sT}, s{sT}, s{sT+1}")
    a("s_waitcnt vmcnt(0)")
    for cg in range(4):
        for tb in range(4):
            d = D + 4*tb
            a(f"ds_read_b64_tr_b16 {vr(d,2)}, v{RA} offset:{tb*4096 + cg*32}")
            a(f"ds_read_b64_tr_b16 {vr(d+2,2)}, v{RA} offset:{tb*4096 + cg*32 + 512}")
        a("s_waitcnt lgkmcnt(0)")
        a(f"s_add_u32 s{sT+3}, s{sT}, {cg*16*4096}")
        for tb in range(4):
            a(f"buffer_store_dwordx4 {vr(D+4*tb,4)}, v{SO}, s[{sR}:{sR+3}], s{sT+3} offen offset:{tb*64}")
        a("s_nop 1")
```

```python
import sys, os
sys.path.insert(0, os.path.dirname(__file__))
from asmlib import *
from layout import *
import k1, kgen

def build(path, kernels=("k1",), stamps=False):
    a = Asm()
    hdr = open("gated_mix__ssm_conv_s4d__geglu_ffn__prompt.s.ref").read().split("\n")
    for l in hdr:
        if l.startswith("; Kernarg") or l.startswith(";   offset"):
            a.lines.append(l)
    if "k1" in kernels: a.lines.append("; @launch kernel=k1_kernel grid=(256,1,1) block=(256,1,1) lds=163840")
    if "k2" in kernels: a.lines.append("; @launch kernel=k2_kernel grid=(256,1,1) block=(256,1,1) lds=163840")
    if "k3" in kernels: a.lines.append("; @launch kernel=k3_kernel grid=(288,1,1) block=(256,1,1) lds=0")
    a.lines.append('.amdgcn_target "amdgcn-amd-amdhsa--gfx950"')
    a.lines.append(".text")
    descs = []
    if "k1" in kernels:
        k1.gen_k1(a, "k1_kernel", stamps=stamps)
        descs.append(kernel_desc("k1_kernel", 512, 102, 256))
    if "k2" in kernels:
        import k2
        a.vm = []; a.lg = []
        k2.gen_k2(a, "k2_kernel", stamps=stamps)
        descs.append(kernel_desc("k2_kernel", 512, 102, 256))
    if "k3" in kernels:
        import k3
        a.vm = []; a.lg = []
        k3.gen_k3(a, "k3_kernel", stamps=stamps)
        descs.append(kernel_desc("k3_kernel", 128, 102, 128))
    if "k1" in kernels:
        kgen.emit_kmap(a, "kmap_table")
    for d in descs: a.lines.append(d)
    open(path, "w").write(a.text())
    print("wrote", path, "lines", len(a.lines))

if __name__ == "__main__":
    out = sys.argv[1]
    ks = sys.argv[2].split(",")
    build(out, ks, stamps=(len(sys.argv) > 3 and sys.argv[3] == "stamps"))
```

```python
from asmlib import *
from layout import *
import k1, kgen
from k1 import stamp, stamp_cyc, stamp_store2, stamp_init, stamp_init2, NST, f2u
import os
OPT = set(os.environ.get("K2OPT", "").split(","))
SC = "sc1"
V_LANE = k1.V_LANE
S_WAVE = k1.S_WAVE
S_NONCE = 65
ACC = 0
FB = 96
V_A = 200
V_B = 206
V_HD = 208
V_WD = 209
V_T = 212
V_TH = 226
V_TW = 227
S_POS = 36
S_HS, S_WS, S_PS = 8, 12, 16
S_M0H, S_M0W, S_HB, S_WB, S_ST, S_HO, S_WO, S_CNT, S_T0, S_STW = range(32, 42)
S_SK, S_MT2, S_NT, S_M7, S_TR2, S_DC = 42, 43, 44, 45, 46, 47
NSLOT = 6; SLOT = 20480

def frA(buf, dtl): return FB + 20*buf + 4*dtl
def frB(buf, tt): return FB + 20*buf + 12 + 4*tt
def g2_reads(k, slot):
    buf = k % 3; ks = k & 1
    def rb(tt):
        off = slot*SLOT + tt*2048 + ks*1024
        win, off = off >> 16, off & 0xffff
        return f"ds_read_b128 {vr(frB(buf,tt),4)}, v{V_B+win} offset:{off}"
    def ra(dtl, rd):
        off = slot*SLOT + 8192 + (2*ks+rd)*3072
        win, off = off >> 16, off & 0xffff
        return f"ds_read_b64_tr_b16 {vr(frA(buf,dtl)+2*rd,2)}, v{V_A+3*win+dtl} offset:{off}"
    return [(rb(0), "B0"), (ra(0,0), "A0"), (ra(0,1), "A0"), (rb(1), "B1"), (ra(1,0), "A1"), (ra(1,1), "A1"), (ra(2,0), "A2"), (ra(2,1), "A2")]

def dma_h(slot, tag):
    return [(f"s_add_u32 m0, s{S_M0H}, {slot*SLOT}", None), ("s_nop 0", None),
            (f"buffer_load_dwordx4 v{V_HD}, s[{S_HS}:{S_HS+3}], s{S_HO} offen {SC} lds", tag),
            (f"buffer_load_dwordx4 v{V_HD}, s[{S_HS}:{S_HS+3}], s{S_HO} offen offset:1024 {SC} lds", tag)]
def dma_wd(slot, tag):
    return [(f"s_add_u32 m0, s{S_M0W}, {slot*SLOT}", None), ("s_nop 0", None)] + \
           [(f"buffer_load_dwordx4 v{V_WD+seg}, s[{S_WS}:{S_WS+3}], s{S_WO} offen offset:{seg*1024} lds", tag) for seg in range(3)]
def nextpos():
    return [(f"v_readlane_b32 s{S_HO}, v{V_TH}, s{S_POS}", None), (f"v_readlane_b32 s{S_WO}, v{V_TW}, s{S_POS}", None),
            (f"s_add_u32 s{S_POS}, s{S_POS}, 1", None)]
def g2_dma(slot, tag):
    return dma_h(slot, tag) + dma_wd(slot, tag) + nextpos()

def g2_block(a, first, override=None, name=None):
    for k in range(12):
        st = k // 2; ks = k & 1
        if ks == 0:
            nxt = (st + 1) % 6
            a.wait(vm=lambda t: t == f"s{nxt}", override=override)
            a("s_barrier")
            if first and st == 4:
                nf = a.newlabel("hf2")
                a(f"s_cmp_eq_u32 s{S_WAVE}, 0")
                a(f"s_cbranch_scc0 {nf}")
                a(f"s_add_u32 s57, s{k1.S_HF}, {FL_H2}\nv_mov_b32 v{V_T}, s{S_NONCE}\nv_mov_b32 v{V_T+1}, 0")
                a(f"s_mov_b64 exec, 1\nbuffer_store_dword v{V_T}, v{V_T+1}, s[52:55], s57 offen sc0 sc1\ns_mov_b64 exec, -1")
                a.label(nf)
            if st == 0 and not first:
                if not a.mute:
                    sk_ = a.newlabel("nochk");
                    a(f"s_cmp_eq_u32 s{S_CNT}, 3")
                    a(f"s_cbranch_scc0 {sk_}")
                    a(f"v_xor_b32 v{V_T+2}, s{S_NONCE}, v{V_T+4}\nv_xor_b32 v{V_T+3}, s{S_NONCE}, v{V_T+5}\nv_or_b32 v{V_T+2}, v{V_T+2}, v{V_T+3}")
                    a(f"v_xor_b32 v{V_T+3}, s{S_NONCE}, v{V_T+6}\nv_or_b32 v{V_T+2}, v{V_T+2}, v{V_T+3}\nv_xor_b32 v{V_T+3}, s{S_NONCE}, v{V_T+7}\nv_or_b32 v{V_T+2}, v{V_T+2}, v{V_T+3}")
                    a(f"v_cmp_ne_u32 vcc, 0, v{V_T+2}")
                    a(f"s_cbranch_vccz {sk_}")
                    sv = list(a.vm)
                    poll(a, name, V_T+8, 52, "s56", "")
                    a.vm = sv
                    a.label(sk_)
                a(f"buffer_load_dwordx4 {vr(V_T+4,4)}, v{V_T+8}, s[52:55], s56 offen sc0 sc1"); a.vm_issue("hf2")
            if st == 1 and not first:
                a(f"s_cmp_eq_u32 s{S_CNT}, 1\ns_cselect_b32 s{S_HS+2}, 0, s{S_HS+2}\ns_cselect_b32 s{S_WS+2}, 0, s{S_WS+2}")
            fslot = (st - 1) % 6
            dm = g2_dma(fslot, f"s{fslot}")
            di = 0
        ka, kb = (k + 1) % 12, (k + 2) % 12
        rds = [(i_, f"{t_}@{ka}") for i_, t_ in g2_reads(ka, ka // 2)[6:]] + [(i_, f"{t_}@{kb}") for i_, t_ in g2_reads(kb, kb // 2)[:6]]
        order = [(0,0),(0,1),(1,0),(1,1),(2,0),(2,1)]
        ri = 0
        for mi, (dtl, tt) in enumerate(order):
            need = {f"B{tt}@{k}", f"A{dtl}@{k}"}
            a.wait(lg=lambda t: t in need)
            acc = ACC + 16*(2*dtl + tt)
            src = "0" if (first and k == 0) else vr(acc,16)
            a(f"v_mfma_f32_32x32x16_bf16 {vr(acc,16)}, {vr(frA(k%3,dtl),4)}, {vr(frB(k%3,tt),4)}, {src}")
            for _ in range([2, 1, 2, 1, 1, 1][mi]):
                ins, tg = rds[ri]; ri += 1
                a(ins); a.lg_issue(tg)
            nd = (len(dm) * (6*ks + mi + 1)) // 12
            while di < nd:
                ins, tg = dm[di]; di += 1
                a(ins)
                if tg: a.vm_issue(tg)

def emitL(a, L):
    for ins, tg in L:
        a(ins)
        if tg: a.vm_issue(tg)

def poll(a, name, voff, srd, soff, nlanes_desc, vt=222):
    lab = a.newlabel(name + "_poll")
    a("s_mov_b32 s58, 0x40000")
    a.label(lab)
    a(f"buffer_load_dwordx4 {vr(vt,4)}, v{voff}, s[{srd}:{srd+3}], {soff} offen sc0 sc1")
    a("s_waitcnt vmcnt(0)")
    a(f"v_xor_b32 v{vt}, s{S_NONCE}, v{vt}\nv_xor_b32 v{vt+1}, s{S_NONCE}, v{vt+1}\nv_xor_b32 v{vt+2}, s{S_NONCE}, v{vt+2}\nv_xor_b32 v{vt+3}, s{S_NONCE}, v{vt+3}")
    a(f"v_or3_b32 v{vt}, v{vt}, v{vt+1}, v{vt+2}\nv_or_b32 v{vt}, v{vt}, v{vt+3}")
    a(f"v_cmp_ne_u32 vcc, 0, v{vt}")
    done = a.newlabel(name + "_pd")
    a(f"s_cbranch_vccz {done}")
    a("s_sleep 2")
    a("s_sub_u32 s58, s58, 1\ns_cmp_lg_u32 s58, 0")
    a(f"s_cbranch_scc1 {lab}")
    a.label(done)
    a.vm = []

def flag_srd(a, base):
    a(f"s_add_u32 s{base}, s4, {WS_FLAG}\ns_addc_u32 s{base+1}, s5, 0\ns_mov_b32 s{base+2}, {FLAG_BYTES}\ns_mov_b32 s{base+3}, 0x20000")

def gemm2_setup(a):
    L_ = V_LANE; T = V_T
    a(f"s_load_dwordx2 s[12:13], s[0:1], {KA_WD}")
    a(f"s_lshr_b32 s{S_SK}, s3, 1")
    a(f"s_and_b32 s51, s3, 1\ns_lshl_b32 s51, s51, 3\ns_and_b32 s{S_M7}, s62, 7\ns_add_u32 s{S_MT2}, s51, s{S_M7}")
    a(f"s_lshr_b32 s{S_NT}, s62, 3")
    a(f"s_lshr_b32 s{S_TR2}, s{S_WAVE}, 1\ns_and_b32 s{S_DC}, s{S_WAVE}, 1")
    a(f"s_lshl_b32 s56, s{S_NT}, 3\ns_mul_i32 s57, s{S_M7}, 3\ns_add_u32 s56, s56, s57")
    a(f"s_cmp_ge_u32 s56, 24\ns_cselect_b32 s57, 24, 0\ns_sub_u32 s56, s56, s57")
    a(f"s_lshl_b32 s57, s{S_MT2}, 2\ns_add_u32 s57, s57, s{S_WAVE}\ns_mul_i32 s57, s57, 288\ns_mul_i32 s58, s{S_SK}, 72\ns_add_u32 s57, s57, s58\ns_lshl_b32 s{S_HB}, s57, 10")
    a(f"s_mul_i32 s57, s{S_SK}, 1152\ns_lshl_b32 s58, s{S_WAVE}, 3\ns_add_u32 s57, s57, s58\ns_mul_i32 s57, s57, 1152\ns_mul_i32 s58, s{S_NT}, 384\ns_add_u32 s{S_WB}, s57, s58")
    t0, t1, t2, t3, t4 = T, T+1, T+2, T+3, T+4
    a(f"v_add_u32 v{t0}, s56, v{L_}")
    a(f"v_subrev_u32 v{t1}, 24, v{t0}\nv_cmp_le_u32 vcc, 24, v{t0}\ns_nop 1\nv_cndmask_b32 v{t0}, v{t0}, v{t1}, vcc")
    a(f"v_mul_u32_u24 v{t1}, 43, v{t0}\nv_lshrrev_b32 v{t1}, 8, v{t1}")
    a(f"v_mul_u32_u24 v{t2}, 6, v{t1}\nv_sub_u32 v{t2}, v{t0}, v{t2}\nv_and_b32 v{t3}, 1, v{t1}\nv_add_u32 v{t2}, v{t2}, v{t3}")
    a(f"v_mul_u32_u24 v{t1}, 9, v{t1}\nv_add_u32 v{t2}, v{t1}, v{t2}")
    a(f"s_lshl_b32 s57, s{S_NT}, 2\ns_mul_i32 s58, s{S_M7}, 3\ns_lshr_b32 s58, s58, 1\ns_add_u32 s57, s57, s58\ns_cmp_ge_u32 s57, 12\ns_cselect_b32 s58, 12, 0\ns_sub_u32 s57, s57, s58")
    a(f"v_subrev_u32 v{t0}, 24, v{L_}\nv_add_u32 v{t0}, s57, v{t0}")
    a(f"v_subrev_u32 v{t1}, 12, v{t0}\nv_cmp_le_u32 vcc, 12, v{t0}\ns_nop 1\nv_cndmask_b32 v{t0}, v{t0}, v{t1}, vcc")
    a(f"v_mul_u32_u24 v{t1}, 86, v{t0}\nv_lshrrev_b32 v{t1}, 8, v{t1}\nv_and_b32 v{t1}, 3, v{t1}")
    a(f"v_mul_u32_u24 v{t3}, 3, v{t1}\nv_sub_u32 v{t3}, v{t0}, v{t3}")
    a(f"v_and_b32 v{t4}, 1, v{t1}\nv_cmp_eq_u32 vcc, 0, v{t3}\ns_nop 1\nv_cndmask_b32 v{t0}, 0, v{t4}, vcc")
    a(f"v_add_u32 v{t3}, 6, v{t3}\nv_cmp_eq_u32 vcc, 1, v{t0}\ns_nop 1\nv_cndmask_b32 v{t3}, v{t3}, 0, vcc" )
    a(f"v_mul_u32_u24 v{t1}, 9, v{t1}\nv_add_u32 v{t3}, v{t1}, v{t3}")
    a(f"v_cmp_gt_u32 vcc, 24, v{L_}\ns_nop 1\nv_cndmask_b32 v{t2}, v{t3}, v{t2}, vcc")
    a(f"v_min_u32 v{t2}, 35, v{t2}")
    a(f"v_lshlrev_b32 v{V_TH}, 11, v{t2}\nv_add_u32 v{V_TH}, s{S_HB}, v{V_TH}")
    a(f"s_mov_b32 s57, {32*1152}\nv_mul_lo_u32 v{V_TW}, v{t2}, s57\nv_add_u32 v{V_TW}, s{S_WB}, v{V_TW}")
    a(f"s_mov_b32 s{S_POS}, 0")
    a(f"s_lshl_b32 s{S_M0H}, s{S_WAVE}, 11")
    a(f"s_mul_i32 s{S_M0W}, s{S_WAVE}, 3072\ns_add_u32 s{S_M0W}, s{S_M0W}, 8192")
    a(f"v_lshlrev_b32 v{V_HD}, 4, v{L_}")
    a(f"v_lshrrev_b32 v{T}, 3, v{L_}")
    a(f"v_mul_u32_u24 v{V_WD}, 1152, v{T}")
    a(f"v_bfe_u32 v{T+1}, v{L_}, 4, 1")
    a(f"v_lshlrev_b32 v{T+1}, 2, v{T+1}")
    a(f"v_and_b32 v{T+2}, 7, v{L_}")
    a(f"v_xor_b32 v{T+1}, v{T+1}, v{T+2}")
    a(f"v_lshlrev_b32 v{T+1}, 4, v{T+1}")
    a(f"v_add_u32 v{V_WD}, v{V_WD}, v{T+1}")
    a(f"v_add_u32 v{V_WD+2}, 0, v{V_WD}")
    a(f"v_add_u32 v{V_WD+1}, {1792-(1024-128)}, v{V_WD}")
    a(f"v_add_u32 v{V_WD}, 1792, v{V_WD}")
    a("s_waitcnt lgkmcnt(0)")
    a(f"s_sub_u32 s12, s12, 1792\ns_subb_u32 s13, s13, 0\ns_mov_b32 s14, {W_BYTES + 1792}\ns_mov_b32 s15, 0x20000")
    a(f"v_lshrrev_b32 v{T}, 5, v{L_}")
    a(f"v_lshlrev_b32 v{T}, 2, v{T}")
    a(f"v_bfe_u32 v{T+1}, v{L_}, 2, 2")
    a(f"v_add_u32 v{T}, v{T}, v{T+1}")
    a(f"v_lshlrev_b32 v{T}, 7, v{T}")
    a(f"v_and_b32 v{T+2}, 1, v{L_}")
    a(f"v_lshlrev_b32 v{T+2}, 1, v{T+2}")
    a(f"v_bfe_u32 v{T+3}, v{L_}, 4, 1")
    a(f"v_add_u32 v{T+2}, v{T+2}, v{T+3}")
    a(f"v_lshlrev_b32 v{T+2}, 4, v{T+2}")
    a(f"v_add_u32 v{T}, v{T}, v{T+2}")
    a(f"v_bfe_u32 v{T+2}, v{L_}, 1, 1")
    a(f"v_lshlrev_b32 v{T+2}, 3, v{T+2}")
    a(f"v_add_u32 v{T}, v{T}, v{T+2}")
    a(f"v_lshrrev_b32 v{T+1}, 1, v{T+1}")
    a(f"v_lshlrev_b32 v{T+1}, 6, v{T+1}")
    for dtl in range(3):
        a(f"s_mul_i32 s56, s{S_DC}, 3\ns_add_u32 s56, s56, {dtl}\ns_and_b32 s57, s56, 1\ns_lshl_b32 s57, s57, 6\ns_lshr_b32 s56, s56, 1\ns_lshl_b32 s56, s56, 10")
        a(f"v_xor_b32 v{T+2}, s57, v{T+1}")
        a(f"v_add_u32 v{T+2}, v{T+2}, v{T}")
        a(f"v_add_u32 v{V_A+dtl}, s56, v{T+2}")
        a(f"v_add_u32 v{V_A+3+dtl}, 0x10000, v{V_A+dtl}")
    a(f"s_lshl_b32 s56, s{S_TR2}, 12")
    a(f"v_add_u32 v{V_B}, s56, v{V_HD}")
    a(f"v_add_u32 v{V_B+1}, 0x10000, v{V_B}")

def gemm2_pre(a, name):
    flag_srd(a, 52)
    a(f"s_lshl_b32 s56, s{S_MT2}, 2\ns_add_u32 s56, s56, s{S_SK}\ns_lshl_b32 s56, s56, 4")
    ok = a.newlabel(name + "_h1ok")
    a(f"v_xor_b32 v192, s{S_NONCE}, v192\nv_xor_b32 v193, s{S_NONCE}, v193\nv_xor_b32 v194, s{S_NONCE}, v194\nv_xor_b32 v195, s{S_NONCE}, v195")
    a("v_or3_b32 v192, v192, v193, v194\nv_or_b32 v192, v192, v195\nv_cmp_ne_u32 vcc, 0, v192")
    a(f"v_mov_b32 v{V_T+8}, 0")
    a(f"s_cbranch_vccz {ok}")
    poll(a, name, V_T+8, 52, "s56", "")
    a.label(ok)
    a(f"s_add_u32 s56, s56, {FL_H2}")
    a(f"s_add_u32 s8, s4, {WS_H}\ns_addc_u32 s9, s5, 0\ns_mov_b32 s10, {H_BYTES}\ns_mov_b32 s11, 0x20000")
    emitL(a, nextpos())
    a("s_nop 4")
    for st in range(2):
        emitL(a, g2_dma(st, f"s{st}"))
        a("s_nop 2")

def gemm2_main(a, name, stamps):
    for st in range(2, 5):
        emitL(a, g2_dma(st, f"s{st}"))
        a("s_nop 2")
    a.wait(vm=lambda t: t == "s0")
    a("s_barrier")
    stamp(a, stamps)
    for ins, tg in g2_reads(0, 0): a(ins); a.lg_issue(f"{tg}@0")
    for ins, tg in g2_reads(1, 0)[:6]: a(ins); a.lg_issue(f"{tg}@1")
    g2_block(a, True, name=name)
    sv_vm, sv_lg = list(a.vm), list(a.lg)
    a.mute = True
    a.waits = []; g2_block(a, False); w1 = list(a.waits)
    a.waits = []; g2_block(a, False); w2 = list(a.waits)
    a.mute = False
    ov = [min([v for v in (x, y) if v is not None], default=None) for x, y in zip(w1, w2)]
    a.vm, a.lg = sv_vm, sv_lg
    a(f"s_mov_b32 s{S_CNT}, 5")
    a(".p2align 6")
    a.label(f"{name}_g2loop")
    g2_block(a, False, override=list(ov), name=name)
    a(f"s_sub_u32 s{S_CNT}, s{S_CNT}, 1\ns_cmp_lg_u32 s{S_CNT}, 0\ns_cbranch_scc1 {name}_g2loop")
    stamp(a, stamps)

OWN = 96
def gemm2_final(a, name, stamps):
    L_ = V_LANE
    a(f"s_add_u32 s16, s4, {WS_PART}\ns_addc_u32 s17, s5, 0\ns_mov_b32 s18, {PART_BYTES}\ns_mov_b32 s19, 0x20000")
    a(f"s_lshl_b32 s56, s{S_MT2}, 2\ns_lshl_b32 s57, s{S_TR2}, 1\ns_add_u32 s48, s56, s57")
    a(f"s_mul_i32 s57, s{S_NT}, 6\ns_mul_i32 s56, s{S_DC}, 3\ns_add_u32 s49, s56, s57")
    a(f"s_mul_i32 s56, s48, 18\ns_add_u32 s56, s56, s49\ns_lshl_b32 s50, s56, 12")
    a(f"s_mul_i32 s57, s{S_SK}, {64*18*4096}\ns_add_u32 s51, s50, s57")
    a("s_nop 7\ns_nop 3")
    labs = [a.newlabel(name + "_v") for _ in range(4)]
    done = a.newlabel(name + "_vd")
    for sk in range(1, 4):
        a(f"s_cmp_eq_u32 s{S_SK}, {sk}")
        a(f"s_cbranch_scc1 {labs[sk]}")
    for sk in range(4):
        a.label(labs[sk])
        for dtl in range(3):
            for tt in range(2):
                a(f"s_add_u32 s57, s51, {(tt*18 + dtl)*4096}")
                for j in range(4):
                    if (tt == sk >> 1) and (j >> 1) == (sk & 1): continue
                    a(f"buffer_store_dwordx4 {vr(ACC + 16*(2*dtl+tt) + 4*j, 4)}, v{V_HD}, s[16:19], s57 offen offset:{j*1024} {SC}")
        for dtl in range(3):
            for i in range(8):
                a(f"v_mov_b32 v{OWN + 8*dtl + i}, v{ACC + 32*dtl + 8*sk + i}")
        if sk < 3: a(f"s_branch {done}")
    a.label(done)
    U, DS, Y, PP, G = 0, 12, 24, 48, 120
    PP3 = 124
    T = V_T
    a(f"s_load_dwordx2 s[8:9], s[0:1], {KA_U}\ns_load_dwordx2 s[12:13], s[0:1], {KA_DSK}\ns_load_dwordx2 s[52:53], s[0:1], {KA_OUT}")
    a(f"s_lshr_b32 s56, s{S_SK}, 1\ns_add_u32 s48, s48, s56")
    a(f"s_and_b32 s57, s{S_SK}, 1")
    a(f"v_and_b32 v{T}, 31, v{L_}\nv_lshrrev_b32 v{T+1}, 5, v{L_}")
    a(f"v_mul_u32_u24 v{T+2}, 1152, v{T}\nv_lshlrev_b32 v{T+3}, 5, v{T+1}\nv_add_u32 v{T+2}, v{T+2}, v{T+3}")
    a(f"s_lshl_b32 s31, s49, 6\ns_lshl_b32 s56, s57, 4\ns_add_u32 s31, s31, s56\ns_mul_i32 s30, s48, {32*1152}\ns_add_u32 s30, s30, s31")
    a(f"v_lshlrev_b32 v{T+4}, 16, v{T+1}\nv_lshlrev_b32 v{T+5}, 1, v{T}\nv_add_u32 v{T+4}, v{T+4}, v{T+5}")
    a(f"s_lshl_b32 s29, s49, 17\ns_lshl_b32 s56, s57, 15\ns_add_u32 s29, s29, s56\ns_lshl_b32 s56, s48, 6\ns_add_u32 s29, s29, s56")
    a(f"v_lshlrev_b32 v{T+5}, 2, v{T}")
    a("s_waitcnt lgkmcnt(0)")
    a(f"s_mov_b32 s10, {X_BYTES}\ns_mov_b32 s11, 0x20000\ns_mov_b32 s14, 1152\ns_mov_b32 s15, 0x20000\ns_mov_b32 s54, {X_BYTES}\ns_mov_b32 s55, 0x20000")
    a("s_waitcnt vmcnt(0)")
    a("s_barrier")
    flag_srd(a, 24)
    a(f"s_mul_i32 s56, s{S_MT2}, 3\ns_add_u32 s56, s56, s{S_NT}\ns_lshl_b32 s28, s56, 4\ns_add_u32 s28, s28, {FL_P}")
    a(f"s_cmp_eq_u32 s{S_WAVE}, 0")
    nf = a.newlabel(name + "_nf")
    a(f"s_cbranch_scc0 {nf}")
    a(f"s_lshl_b32 s56, s{S_SK}, 2\ns_add_u32 s56, s56, s28\nv_mov_b32 v{T+6}, s{S_NONCE}\nv_mov_b32 v{T+7}, 0")
    a(f"s_mov_b64 exec, 1\nbuffer_store_dword v{T+6}, v{T+7}, s[24:27], s56 offen sc0 sc1\ns_mov_b64 exec, -1")
    a.label(nf)
    stamp(a, stamps)
    for dtl in range(3):
        a(f"buffer_load_dwordx4 {vr(U+4*dtl,4)}, v{T+2}, s[8:11], s30 offen offset:{dtl*64}")
        a(f"buffer_load_dwordx4 {vr(DS+4*dtl,4)}, v{T+3}, s[12:15], s31 offen offset:{dtl*64}")
    a(f"v_lshlrev_b32 v{T+6}, 4, v{L_}\ns_mul_i32 s56, s{S_NT}, 768\ns_add_u32 s56, s56, {FL_Y}\nv_add_u32 v{T+6}, s56, v{T+6}")
    a(f"s_lshl_b32 s56, s48, 4\ns_add_u32 s56, s56, {FL_G}\nv_mov_b32 v{T+7}, s56\nv_cmp_le_u32 vcc, 48, v{L_}\ns_nop 1\nv_cndmask_b32 v{T+6}, v{T+6}, v{T+7}, vcc")
    poll(a, name, T+6, 24, "0", "")
    a(f"s_add_u32 s32, s4, {WS_YT}\ns_addc_u32 s33, s5, 0\ns_mov_b32 s34, {UT_BYTES}\ns_mov_b32 s35, 0x20000")
    a(f"s_add_u32 s36, s4, {WS_G}\ns_addc_u32 s37, s5, 0\ns_mov_b32 s38, 8192\ns_mov_b32 s39, 0x20000")
    for dtl in range(3):
        for k in range(8):
            a(f"s_add_u32 s56, s29, {(dtl*32 + k)*4096}")
            a(f"buffer_load_ushort v{Y+8*dtl+k}, v{T+4}, s[32:35], s56 offen {SC}")
    a(f"s_lshl_b32 s56, s48, 7")
    a(f"buffer_load_dword v{G}, v{T+5}, s[36:39], s56 offen {SC}")
    a(f"v_mov_b32 v{T+6}, 0")
    sv = list(a.vm)
    poll(a, name, T+6, 24, "s28", "")
    stamp(a, stamps)
    a(f"s_mul_i32 s56, s48, 18\ns_add_u32 s56, s56, s49\ns_lshl_b32 s50, s56, 12\ns_lshl_b32 s56, s57, 11\ns_add_u32 s50, s50, s56")
    for p in range(3):
        a(f"s_add_u32 s56, s{S_SK}, {p+1}\ns_and_b32 s56, s56, 3\ns_mul_i32 s56, s56, {64*18*4096}\ns_add_u32 s56, s56, s50")
        for dtl in range(3):
            dst = (PP + 8*(2*dtl + p)) if p < 2 else (PP3 + 8*dtl)
            a(f"s_add_u32 s51, s56, {dtl*4096}")
            a(f"buffer_load_dwordx4 {vr(dst,4)}, v{V_HD}, s[16:19], s51 offen {SC}")
            a(f"buffer_load_dwordx4 {vr(dst+4,4)}, v{V_HD}, s[16:19], s51 offen offset:1024 {SC}")
    a(f"v_sub_f32 v{G+1}, 1.0, v{G}")
    a(f"v_cvt_pk_bf16_f32 v{G+1}, v{G+1}, v{G+1}\nv_and_b32 v{G+1}, 0xffff0000, v{G+1}")
    a("s_waitcnt vmcnt(0)")
    t0, t1, t2, t3 = T+6, T+7, T+8, T+9
    for dtl in range(3):
        for i in range(8):
            a(f"v_add_f32 v{OWN+8*dtl+i}, v{OWN+8*dtl+i}, v{PP+16*dtl+i}")
            a(f"v_add_f32 v{PP+16*dtl+8+i}, v{PP+16*dtl+8+i}, v{PP3+8*dtl+i}")
        for i in range(8):
            a(f"v_add_f32 v{OWN+8*dtl+i}, v{OWN+8*dtl+i}, v{PP+16*dtl+8+i}")
        for q in range(4):
            k = 2*q
            a(f"v_lshlrev_b32 v{t0}, 16, v{U+4*dtl+q}\nv_and_b32 v{t1}, 0xffff0000, v{U+4*dtl+q}")
            a(f"v_lshlrev_b32 v{t2}, 16, v{DS+4*dtl+q}\nv_and_b32 v{t3}, 0xffff0000, v{DS+4*dtl+q}")
            a(f"v_mul_f32 v{t0}, v{t0}, v{t2}\nv_mul_f32 v{t1}, v{t1}, v{t3}")
            a(f"v_cvt_pk_bf16_f32 v{t0}, v{t0}, v{t1}")
            a(f"v_and_b32 v{t1}, 0xffff0000, v{t0}\nv_lshlrev_b32 v{t0}, 16, v{t0}")
            a(f"v_lshlrev_b32 v{t2}, 16, v{Y+8*dtl+k}\nv_lshlrev_b32 v{t3}, 16, v{Y+8*dtl+k+1}")
            a(f"v_add_f32 v{t0}, v{t0}, v{t2}\nv_add_f32 v{t1}, v{t1}, v{t3}")
            a(f"v_cvt_pk_bf16_f32 v{t0}, v{t0}, v{t1}")
            a(f"v_and_b32 v{t1}, 0xffff0000, v{t0}\nv_lshlrev_b32 v{t0}, 16, v{t0}")
            a(f"v_mul_f32 v{t0}, v{t0}, v{G}\nv_mul_f32 v{t1}, v{t1}, v{G}")
            a(f"v_cvt_pk_bf16_f32 v{t0}, v{t0}, v{t1}")
            a(f"v_and_b32 v{t1}, 0xffff0000, v{t0}\nv_lshlrev_b32 v{t0}, 16, v{t0}")
            a(f"v_cvt_pk_bf16_f32 v{t2}, v{OWN+8*dtl+k}, v{OWN+8*dtl+k+1}")
            a(f"v_and_b32 v{t3}, 0xffff0000, v{t2}\nv_lshlrev_b32 v{t2}, 16, v{t2}")
            a(f"v_mul_f32 v{t2}, v{t2}, v{G+1}\nv_mul_f32 v{t3}, v{t3}, v{G+1}")
            a(f"v_cvt_pk_bf16_f32 v{t2}, v{t2}, v{t3}")
            a(f"v_and_b32 v{t3}, 0xffff0000, v{t2}\nv_lshlrev_b32 v{t2}, 16, v{t2}")
            a(f"v_add_f32 v{t0}, v{t0}, v{t2}\nv_add_f32 v{t1}, v{t1}, v{t3}")
            a(f"v_cvt_pk_bf16_f32 v{U+4*dtl+q}, v{t0}, v{t1}")
        a(f"buffer_store_dwordx4 {vr(U+4*dtl,4)}, v{T+2}, s[52:55], s30 offen offset:{dtl*64}")

KC_PITCH = 4160
KC_BYTES = 4*KC_PITCH
U_OFF = 2*KC_BYTES
CW_REGION = 40960
def first_use(mf, mi):
    n = mf[mi][0]
    return all(mf[j][0] != n for j in range(mi))

class ConvRegs:
    ACCc = 0; FA = 32; FBc = 96
    VA, VB, VUO, VYO, VKD, VUZ = 160, 161, 162, 163, 168, 165
    UPF = 208; T = 190; PKR = 200
    sK, sU, sY = 8, 12, 16
    sCH, sLB, sT0, sT1, sKO, sSTR, sN, sUO = 21, 22, 24, 25, 27, 28, 29, 30
    GX, GW, GT_ = 0, 40, 80
def kdma(buf):
    R = ConvRegs
    G = []
    for c in range(4):
        G.append(([f"s_sub_u32 s{R.sT0}, s{R.sKO}, {2*c}", f"s_add_u32 m0, s{R.sLB}, {buf*KC_BYTES + c*KC_PITCH}", "s_nop 0",
                   f"buffer_load_dwordx4 v{R.VKD}, s[{R.sK}:{R.sK+3}], s{R.sT0} offen {SC} lds"], "k"))
        for it in range(1, 4):
            G.append(([f"buffer_load_dwordx4 v{R.VKD}, s[{R.sK}:{R.sK+3}], s{R.sT0} offen offset:{it*1024} {SC} lds"], "k"))
        G.append(([f"s_add_u32 m0, s{R.sLB}, {buf*KC_BYTES + c*KC_PITCH + 4096}", f"s_add_u32 s{R.sT0}, s{R.sT0}, 4096", "s_mov_b64 exec, 15",
                   f"buffer_load_dwordx4 v{R.VKD}, s[{R.sK}:{R.sK+3}], s{R.sT0} offen {SC} lds", "s_mov_b64 exec, -1"], "k"))
    return G
def uload():
    R = ConvRegs
    return [([f"buffer_load_dwordx4 {vr(R.UPF+4*it,4)}, v{R.VKD}, s[{R.sU}:{R.sU+3}], s{R.sUO} offen offset:{it*1024} {SC}"], "u") for it in range(4)]
def emitg(a, G):
    for ins, tg in G:
        for x in ins: a(x)
        a.vm_issue(tg)

def conv_pre(a, name):
    R = ConvRegs; L_ = V_LANE
    GX, GW, GT_ = R.GX, R.GW, R.GT_
    a(f"s_load_dwordx2 s[36:37], s[0:1], {KA_U}\ns_load_dwordx2 s[40:41], s[0:1], {KA_GW}")
    a(f"s_mov_b32 s31, s{R.sCH}")
    a(f"s_mul_i32 s{R.sLB}, s{S_WAVE}, {CW_REGION}")
    a(f"s_add_u32 s8, s4, {WS_KREV-16}\ns_addc_u32 s9, s5, 0\ns_mov_b32 s10, {KREV_BYTES+16}\ns_mov_b32 s11, 0x20000")
    a(f"s_add_u32 s12, s4, {WS_UT}\ns_addc_u32 s13, s5, 0\ns_mov_b32 s14, {UT_BYTES}\ns_mov_b32 s15, 0x20000")
    a(f"v_lshlrev_b32 v{R.VKD}, 4, v{L_}")
    ok = a.newlabel(name + "_sfok")
    a(f"v_xor_b32 v196, s{S_NONCE}, v196\nv_xor_b32 v197, s{S_NONCE}, v197\nv_xor_b32 v198, s{S_NONCE}, v198\nv_xor_b32 v199, s{S_NONCE}, v199")
    a("v_or3_b32 v196, v196, v197, v198\nv_or_b32 v196, v196, v199\nv_cmp_ne_u32 vcc, 0, v196")
    a(f"s_cbranch_vccz {ok}")
    flag_srd(a, 52)
    a(f"s_movk_i32 s56, {FL_S}")
    sv = list(a.vm)
    poll(a, name, R.VKD, 52, "s56", "")
    a.vm = sv
    a.label(ok)
    a(f"s_mul_i32 s{R.sKO}, s{R.sCH}, {KREV_PITCH}\ns_add_u32 s{R.sKO}, s{R.sKO}, 16")
    a(f"s_lshl_b32 s{R.sUO}, s{R.sCH}, 12")
    emitg(a, uload()); emitg(a, kdma(0))
    a(f"v_and_b32 v{GT_}, 7, v{L_}\nv_lshlrev_b32 v{GT_}, 4, v{GT_}\nv_lshrrev_b32 v{GT_+1}, 3, v{L_}")
    a(f"v_mul_u32_u24 v{GT_+2}, 1152, v{GT_+1}\nv_add_u32 v{GT_+2}, v{GT_+2}, v{GT_}")
    a(f"s_mul_i32 s44, s61, {8*1152}")
    a("s_waitcnt lgkmcnt(0)")
    a(f"s_mov_b32 s38, {X_BYTES}\ns_mov_b32 s39, 0x20000\ns_mov_b32 s42, 1152\ns_mov_b32 s43, 0x20000")
    for i in range(9):
        a(f"buffer_load_dwordx4 {vr(GX+4*i,4)}, v{GT_+2}, s[36:39], s44 offen offset:{i*128}"); a.vm_issue("u")
        a(f"buffer_load_dwordx4 {vr(GW+4*i,4)}, v{GT_}, s[40:43], 0 offen offset:{i*128}"); a.vm_issue("u")

def gen_conv(a, name, stamps):
    R = ConvRegs; L_ = V_LANE
    ACCc, FA, FBc = R.ACCc, R.FA, R.FBc
    VA, VB, VUO, VYO, VKD, VUZ = R.VA, R.VB, R.VUO, R.VYO, R.VKD, R.VUZ
    UPF, T, PKR = R.UPF, R.T, R.PKR
    sK, sU, sY = R.sK, R.sU, R.sY
    sCH, sLB, sT0, sT1, sKO, sSTR, sN, sUO = R.sCH, R.sLB, R.sT0, R.sT1, R.sKO, R.sSTR, R.sN, R.sUO
    GX, GW, GT_ = R.GX, R.GW, R.GT_
    a(f"s_add_u32 s16, s4, {WS_YT}\ns_addc_u32 s17, s5, 0\ns_mov_b32 s18, {UT_BYTES}\ns_mov_b32 s19, 0x20000")
    a("s_waitcnt vmcnt(0)")
    a.vm = []
    stamp(a, stamps)
    T_ = GT_
    acc = [T_+3, T_+4, T_+5, T_+6]
    for r in acc: a(f"v_mov_b32 v{r}, 0")
    for i in range(36):
        a(f"v_dot2c_f32_bf16 v{acc[i%4]}, v{GX+i}, v{GW+i}")
    a("s_nop 3")
    a(f"v_add_f32 v{T_+3}, v{T_+3}, v{T_+4}\nv_add_f32 v{T_+5}, v{T_+5}, v{T_+6}\nv_add_f32 v{T_+3}, v{T_+3}, v{T_+5}")
    a("s_nop 1")
    a(f"v_add_f32_dpp v{T_+3}, v{T_+3}, v{T_+3} quad_perm:[1,0,3,2] row_mask:0xf bank_mask:0xf")
    a("s_nop 1")
    a(f"v_add_f32_dpp v{T_+3}, v{T_+3}, v{T_+3} quad_perm:[2,3,0,1] row_mask:0xf bank_mask:0xf")
    a("s_nop 1")
    a(f"v_add_f32_dpp v{T_+3}, v{T_+3}, v{T_+3} row_half_mirror row_mask:0xf bank_mask:0xf")
    a(f"v_cvt_pk_bf16_f32 v{T_+3}, v{T_+3}, v{T_+3}")
    a(f"v_and_b32 v{T_+3}, 0xffff0000, v{T_+3}")
    a(f"v_mul_f32 v{T_+3}, 0x{f2u(-1.4426950408889634):08x}, v{T_+3}")
    a(f"v_exp_f32 v{T_+3}, v{T_+3}")
    a("s_nop 0")
    a(f"v_add_f32 v{T_+3}, 1.0, v{T_+3}")
    a(f"v_rcp_f32 v{T_+3}, v{T_+3}")
    a("s_nop 0")
    a(f"v_cvt_pk_bf16_f32 v{T_+3}, v{T_+3}, v{T_+3}")
    a(f"v_and_b32 v{T_+3}, 0xffff0000, v{T_+3}")
    a(f"v_lshlrev_b32 v{T_+4}, 2, v{T_+1}")
    a(f"s_add_u32 s36, s4, {WS_G}\ns_addc_u32 s37, s5, 0\ns_mov_b32 s38, 8192\ns_mov_b32 s39, 0x20000")
    a(f"s_lshl_b32 s44, s61, 5")
    a(f"v_cmp_eq_u32 vcc, 0, v{T_}")
    a("s_and_saveexec_b64 s[46:47], vcc")
    a(f"buffer_store_dword v{T_+3}, v{T_+4}, s[36:39], s44 offen {SC}"); a.vm_issue("g")
    a("s_mov_b64 exec, s[46:47]")
    a(f"v_and_b32 v{T}, 3, v{L_}")
    a(f"v_mul_u32_u24 v{VA}, {KC_PITCH}, v{T}")
    a(f"v_lshrrev_b32 v{T}, 5, v{L_}")
    a(f"v_lshlrev_b32 v{T}, 5, v{T}")
    a(f"v_sub_u32 v{VA}, v{VA}, v{T}")
    a(f"v_bfe_u32 v{T+1}, v{L_}, 4, 1")
    a(f"v_lshlrev_b32 v{T+1}, 4, v{T+1}")
    a(f"v_add_u32 v{VA}, v{VA}, v{T+1}")
    a(f"v_and_b32 v{T+2}, 12, v{L_}")
    a(f"v_lshlrev_b32 v{T+2}, 1, v{T+2}")
    a(f"v_sub_u32 v{VA}, v{VA}, v{T+2}")
    a(f"v_add_u32 v{VA}, {4096 - 64*63 + 64*7}, v{VA}")
    a(f"v_add_u32 v{VA}, s{sLB}, v{VA}")
    a(f"v_and_b32 v{T+2}, 15, v{L_}")
    a(f"v_lshlrev_b32 v{VB}, 5, v{T+2}")
    a(f"v_sub_u32 v{VB}, v{VB}, v{T}")
    a(f"v_add_u32 v{VB}, v{VB}, v{T+1}")
    a(f"v_add_u32 v{VB}, {U_OFF + 512}, v{VB}")
    a(f"v_add_u32 v{VB}, s{sLB}, v{VB}")
    a(f"v_add_u32 v{VUO}, {U_OFF + 512}, v{VKD}")
    a(f"v_add_u32 v{VUO}, s{sLB}, v{VUO}")
    a(f"v_subrev_u32 v{VUZ}, 512, v{VUO}")
    for i in range(4): a(f"v_mov_b32 v{PKR+i}, 0")
    a("s_mov_b32 exec_hi, 0")
    a(f"ds_write_b128 v{VUZ}, {vr(PKR,4)}")
    a("s_mov_b64 exec, -1")
    a(f"v_lshlrev_b32 v{VYO}, 5, v{T+2}")
    a(f"v_lshrrev_b32 v{T+3}, 4, v{L_}")
    a(f"v_lshlrev_b32 v{T+3}, 3, v{T+3}")
    a(f"v_add_u32 v{VYO}, v{VYO}, v{T+3}")
    for chn in range(3):
        buf = chn & 1
        a.wait(vm=lambda t: t in ("u", "k"))
        stamp(a, stamps)
        for it in range(4):
            a(f"ds_write_b128 v{VUO}, {vr(UPF+4*it,4)} offset:{it*1024}")
        a(f"s_lshl_b32 s{sT1}, s{sCH}, 12")
        pf = []
        if chn < 2:
            a(f"s_add_u32 s{sCH}, s{sCH}, s{sSTR}")
            a(f"s_mul_i32 s{sKO}, s{sCH}, {KREV_PITCH}\ns_add_u32 s{sKO}, s{sKO}, 16")
            a(f"s_lshl_b32 s{sUO}, s{sCH}, 12")
            a(f"s_cmp_gt_u32 s{sN}, {chn+1}\ns_cselect_b32 s{sK+2}, s{sK+2}, 0\ns_cselect_b32 s{sU+2}, s{sU+2}, 0")
            pf = kdma(buf ^ 1)
        a("s_waitcnt lgkmcnt(0)")
        a.lg = []
        VAc, VBc = T, T+1
        a(f"v_add_u32 v{VAc}, {buf*KC_BYTES}, v{VA}")
        a(f"v_mov_b32 v{VBc}, v{VB}")
        def reads(rho, fb):
            r = []
            for x in range(8):
                r.append((f"ds_read_b64 {vr(FA+32*fb+4*x,2)}, v{VAc} offset:{512*(7-x)}", f"A{x}"))
                r.append((f"ds_read_b64 {vr(FA+32*fb+4*x+2,2)}, v{VAc} offset:{512*(7-x)+8}", f"A{x}"))
                r.append((f"ds_read_b128 {vr(FBc+32*fb+4*x,4)}, v{VBc} offset:{512*x}", f"B{x}"))
            return r
        for ins, tg in reads(0, 0)[:12]:
            a(ins); a.lg_issue(f"{tg}@0")
        pend = reads(0, 0)[12:]
        pfq = (uload() if chn < 2 else []) + pf
        for rho in range(8):
            fb = rho & 1
            mf = [(n, x) for n in range(8) for x in range(n+1)]
            mf.sort(key=lambda p: (max(p[1], p[0]-p[1]), p[0]))
            nxt = reads(rho+1, fb ^ 1) if rho < 7 else []
            queue = [(ins, f"{tg}@{rho}") for ins, tg in pend]
            nq = [(ins, f"{tg}@{rho+1}") for ins, tg in nxt[:12]]
            pend = nxt[12:]
            allq = queue + ([("ADDR", None)] if rho < 7 else []) + nq
            qi = [0]
            def issue_one():
                ins, tg = allq[qi[0]]; qi[0] += 1
                if ins == "ADDR":
                    a(f"v_subrev_u32 v{VAc}, 64, v{VAc}\nv_subrev_u32 v{VBc}, 64, v{VBc}")
                else:
                    if len(a.lg) >= 15: a.wait(lg=lambda t: t == a.lg[0])
                    a(ins); a.lg_issue(tg)
            for mi, (n, x) in enumerate(mf):
                need = {f"A{x}@{rho}", f"B{n-x}@{rho}"}
                while any((tg in need) for _, tg in allq[qi[0]:]): issue_one()
                a.wait(lg=lambda t: t in need)
                src = "0" if (rho == 0 and first_use(mf, mi)) else vr(ACCc+4*n,4)
                a(f"v_mfma_f32_16x16x32_bf16 {vr(ACCc+4*n,4)}, {vr(FA+32*fb+4*x,4)}, {vr(FBc+32*fb+4*(n-x),4)}, {src}")
                if qi[0] < len(allq) and len(a.lg) < 15: issue_one()
                elif mi >= 26 and pfq and mi % 3 == 0:
                    ins, tg = pfq.pop(0)
                    for y in ins: a(y)
                    a.vm_issue(tg)
            while qi[0] < len(allq): issue_one()
        for ins, tg in pfq:
            for y in ins: a(y)
            a.vm_issue(tg)
        stamp(a, stamps)
        a("s_nop 7")
        for n in range(8):
            p = PKR + 2*(n & 1)
            a(f"v_cvt_pk_bf16_f32 v{p}, v{ACCc+4*n}, v{ACCc+4*n+1}")
            a(f"v_cvt_pk_bf16_f32 v{p+1}, v{ACCc+4*n+2}, v{ACCc+4*n+3}")
            a(f"buffer_store_dwordx2 {vr(p,2)}, v{VYO}, s[{sY}:{sY+3}], s{sT1} offen offset:{512*n} {SC}"); a.vm_issue("y")
            a("s_nop 0")
        if chn < 2:
            a(f"s_cmp_gt_u32 s{sN}, {chn+1}")
            a(f"s_cbranch_scc0 {name}_convdone")
    a.label(f"{name}_convdone")
    a("s_waitcnt vmcnt(0)")
    flag_srd(a, 52)
    a(f"v_mul_u32_u24 v{T}, s{sSTR}, v{L_}\nv_add_u32 v{T}, s31, v{T}\nv_lshlrev_b32 v{T}, 2, v{T}\nv_add_u32 v{T}, {FL_Y}, v{T}")
    a(f"v_mov_b32 v{T+1}, s{S_NONCE}")
    a(f"v_cmp_gt_u32 vcc, s{sN}, v{L_}")
    a("s_and_saveexec_b64 s[56:57], vcc")
    a(f"buffer_store_dword v{T+1}, v{T}, s[52:55], 0 offen sc0 sc1")
    a("s_mov_b64 exec, s[56:57]")
    a(f"s_lshl_b32 s50, s61, 2\ns_add_u32 s50, s50, {FL_G}\nv_mov_b32 v{T}, 0")
    a(f"s_mov_b64 exec, 1\nbuffer_store_dword v{T+1}, v{T}, s[52:55], s50 offen sc0 sc1\ns_mov_b64 exec, -1")

def gen_fused(a, name, stamps=False):
    k1.gen_k1(a, name, stamps=stamps, fused=True)
    T = k1.V_T
    a("s_waitcnt lgkmcnt(0)")
    a("s_barrier")
    a.vm = []; a.lg = []
    a("s_lshr_b32 s62, s2, 3")
    for r in (V_HD, V_WD, V_WD+1, V_WD+2, ConvRegs.VKD, V_T+8): a(f"v_mov_b32 v{r}, 0")
    a("s_cmp_ge_u32 s62, 24")
    a(f"s_cbranch_scc1 {name}_notg2")
    gemm2_setup(a)
    gemm2_pre(a, name)
    for ins, cost, vt, lt in k1.gelu_half():
        a(ins)
        if vt: a.vm_issue(vt)
    stamp(a, stamps)
    n0 = NST[0]
    gemm2_main(a, name, stamps)
    gemm2_final(a, name, stamps)
    a(f"s_branch {name}_fin")
    a.label(f"{name}_notg2")
    a.vm = []; a.lg = []
    a("s_nop 7")
    for ins, cost, vt, lt in k1.gelu_half():
        a(ins)
    a("s_cmp_ge_u32 s62, 30")
    a(f"s_cbranch_scc1 {name}_pre_sp")
    a(f"s_mul_i32 s50, s3, 6\ns_add_u32 s50, s50, s62\ns_sub_u32 s50, s50, 24\ns_lshl_b32 s50, s50, 2\ns_add_u32 s21, s50, s{S_WAVE}")
    a("s_movk_i32 s28, 192\ns_cmp_lt_u32 s21, 128\ns_cselect_b32 s29, 3, 2\ns_mov_b32 s61, s21")
    conv_pre(a, name)
    a("s_waitcnt vmcnt(42)")
    a(f"s_branch {name}_pre_done")
    a.label(f"{name}_pre_sp")
    a("s_waitcnt vmcnt(0)")
    a.label(f"{name}_pre_done")
    a("s_barrier")
    nf = a.newlabel(name + "_nhf")
    a(f"s_cmp_eq_u32 s{S_WAVE}, 0")
    a(f"s_cbranch_scc0 {nf}")
    flag_srd(a, 52)
    a(f"v_mov_b32 v{T}, s{S_NONCE}\nv_mov_b32 v{T+1}, 0\ns_add_u32 s57, s{k1.S_HF}, {FL_H2}")
    a(f"s_mov_b64 exec, 1\nbuffer_store_dword v{T}, v{T+1}, s[52:55], s57 offen sc0 sc1\ns_mov_b64 exec, -1")
    a.label(nf)
    NST[0] = n0 - 1
    stamp(a, stamps)
    a("s_cmp_ge_u32 s62, 30")
    a(f"s_cbranch_scc0 {name}_conv")
    a.label(f"{name}_g")
    a.vm = []; a.lg = []
    a("s_lshl_b32 s60, s3, 1\ns_add_u32 s60, s60, s62\ns_sub_u32 s60, s60, 30")
    a(f"s_and_b32 s31, s{S_WAVE}, 1\ns_lshr_b32 s32, s{S_WAVE}, 1")
    a(f"s_lshl_b32 s34, s{S_WAVE}, 14\ns_xor_b32 s35, s34, 16384")
    a(f"s_lshl_b32 s33, s60, 2\ns_add_u32 s33, s33, s32\ns_add_u32 s33, s33, 512")
    kg = kgen.KGen(a, 0, 33, 31, 34, 35, V_LANE, 40, "kmap_table")
    kg.sloads()
    a("s_add_u32 s36, s33, 2")
    a("s_waitcnt lgkmcnt(0)")
    kg.issue_params(s_ch=33, pb=144)
    kg.issue_params(s_ch=36, pb=150)
    for grp in kg.map_groups():
        for y in grp: a(y)
    kg.compute(wait_params=8, wait_map=0, pb=144)
    a("s_barrier")
    a("s_mov_b32 s33, s36")
    kg.compute(wait_params=None, wait_map=63, pb=150)
    a("s_waitcnt vmcnt(0) lgkmcnt(0)")
    a(f"s_lshl_b32 s21, s60, 2\ns_add_u32 s21, s21, s{S_WAVE}\ns_add_u32 s61, s21, 192\ns_add_u32 s21, s21, 512\ns_mov_b32 s28, 0\ns_mov_b32 s29, 1")
    a("s_barrier")
    a.vm = []
    conv_pre(a, name)
    a.label(f"{name}_conv")
    a.vm = []; a.lg = []
    NST[0] = n0
    gen_conv(a, name, stamps)
    a.label(f"{name}_fin")
    a("s_waitcnt vmcnt(0)")
    NST[0] = 15
    stamp(a, stamps)
    if stamps: stamp_store2(a, 0)
    a.label(f"{name}_end")
    a("s_endpgm")
```

```python
from asmlib import *
from layout import *
import kgen
import os, struct
OPT = set(os.environ.get("K1OPT", "").split(","))
def f2u(x): return struct.unpack("<I", struct.pack("<f", x))[0]

A_SET = 0
P_SET = 64
WF = 128
GT = 152
HP = 160
V_TR = 168
V_WO = 171
V_XO = 175
V_HOFF = 179
V_C2 = 180
V_C1 = 181
V_LANE = 182
V_TRN = 183
V_T = 186
V_NV = 184
XV = 224
V_XR = P_SET

S_X, S_W, S_H = 8, 12, 16
S_WAVE, S_MT, S_FC, S_TR, S_CNT, S_M0W, S_XB, S_HO0, S_HO1, S_HOH, S_HX, S_WJ = range(20, 32)
S_WC = 32
S_XC = 41
S_KG = 68

def XF(s, tt):
    if s < 32: return ar(8*s + 4*tt, 4)
    return vr(XV + 8*(s-32) + 4*tt, 4)

XI = [2, 4, 6, 8, 0, 2, 4, 6, 8]
SG = [3, 5, 7, 9, 1, 3, 5, 7, 9]

GELU_C1 = -2.0 * 0.7978845608028654 * 1.4426950408889634
GELU_C2 = GELU_C1 * 0.044715
HSTORE_FLAGS = os.environ.get("HFLAGS", "sc1")

NST = [0]
def streg(i):
    assert i < 16
    return 88 + 2*i if i < 6 else 68 + 2*(i-6)
SKIP = [0]
FUSED = [False]
def stamp(a, on):
    if not on: return
    if SKIP[0]: return
    i = NST[0]; NST[0] += 1
    a(f"s_memrealtime s[{streg(i)}:{streg(i)+1}]")
def stamp_cyc(a, on):
    if not on: return
    i = NST[0]; NST[0] += 1
    a(f"s_memtime s[{streg(i)}:{streg(i)+1}]")
def stamp_init(a, on):
    if not on: return
    for i in range(6): a(f"s_mov_b32 s{streg(i)}, -1")
def stamp_init2(a, on):
    if not on: return
    for i in range(6, 16): a(f"s_mov_b32 s{streg(i)}, -1")
def stamp_store2(a, kidx=0, vlane=None, vt=200, swave=None):
    n = NST[0]
    vlane = V_LANE if vlane is None else vlane
    swave = S_WAVE if swave is None else swave
    a("s_waitcnt lgkmcnt(0)")
    a(f"s_add_u32 s56, s4, {0x3100000 + kidx*0x40000}\ns_addc_u32 s57, s5, 0\ns_mov_b32 s58, 0x40000\ns_mov_b32 s59, 0x20000")
    a(f"s_lshl_b32 s50, s2, 2\ns_add_u32 s50, s50, s{swave}\ns_lshl_b32 s50, s50, 7")
    a(f"v_mov_b32 v{vt}, s50")
    a(f"v_cmp_eq_u32 vcc, 0, v{vlane}")
    a("s_and_saveexec_b64 s[52:53], vcc")
    for i in range(n):
        a(f"v_mov_b32 v{vt+1}, s{streg(i)}")
        a(f"buffer_store_dword v{vt+1}, v{vt}, s[56:59], 0 offen offset:{4*i}")
    a("s_mov_b64 exec, s[52:53]")

def dma_w(c, slot, i, tag):
    return [((slot, f"buffer_load_dwordx4 v{V_WO+i}, s[{S_W}:{S_W+3}], s{S_WC+c} offen offset:{i*1024} lds"), 8 + (8 if i == 0 else 0), tag, None)]
def dma_x(c, slot, i, tag):
    return [((slot, f"buffer_load_dwordx4 v{V_XO+i}, s[{S_X}:{S_X+3}], s{S_XC+c} offen offset:{i*1024} lds"), 8 + (8 if i == 0 else 0), tag, None)]
class Emit:
    def __init__(self, a):
        self.a = a; self.m0 = None
    def __call__(self, items):
        a = self.a
        for (ins, cost, vt, lt) in items:
            if isinstance(ins, tuple):
                slot, txt = ins
                if self.m0 != slot:
                    a(f"s_add_u32 m0, s{S_M0W}, {slot*16384}"); self.m0 = slot
                    a("s_nop 0")
                a(txt)
            else:
                a(ins)
            if vt: a.vm_issue(vt)
            if lt: a.lg_issue(lt)
def adv_w():
    return [(f"s_add_u32 s{S_W}, s{S_W}, 128", 4, None, None), (f"s_addc_u32 s{S_W+1}, s{S_W+1}, 0", 4, None, None),
            (f"s_sub_u32 s{S_W+2}, s{S_W+2}, 128", 4, None, None)]

def wread(s, k, slot, areg=None):
    mat, rd = k >> 1, k & 1
    sp = s % 4
    off = slot*16384 + mat*8192 + sp*2048 + rd*512
    win, off = off >> 16, off & 0xffff
    dst = WF + 8*(s % 3) + 4*mat + 2*rd
    r = V_TR + win if areg is None else areg
    return f"ds_read_b64_tr_b16 {vr(dst,2)}, v{r} offset:{off}"

def xread(s, tt):
    c = s // 4; sp = s % 4
    off = XI[c]*16384 + tt*4096
    win, off = off >> 16, off & 0xffff
    return f"ds_read_b128 {XF(s,tt)}, v{V_XR + 4*win + sp} offset:{off}"

def mfma(s, m, first_c0, last_to_p):
    tt, mat = [(0,0),(0,1),(1,1),(1,0)][m]
    acc = A_SET + 32*mat + 16*tt
    dst = (P_SET + 32*mat + 16*tt) if last_to_p else acc
    src = "0" if first_c0 else vr(acc, 16)
    wf = WF + 8*(s % 3) + 4*mat
    return f"v_mfma_f32_32x32x16_bf16 {vr(dst,16)}, {vr(wf,4)}, {XF(s,tt)}, {src}"
def mfma_half(s, mat, fc):
    acc = A_SET + 32*mat
    src = "0" if s == 0 else vr(acc, 16)
    wf = WF + 8*(s % 3) + 4*mat
    return f"v_mfma_f32_32x32x16_bf16 {vr(acc,16)}, {vr(wf,4)}, {XF(s,fc)}, {src}"

def gelu_ops(tiles):
    ops = []; gi = 0
    for (gb, ub, so) in tiles:
        for sp in range(2):
            for half in range(2):
                g = [gb + 8*sp + 4*half + i for i in range(4)]
                u = [ub + 8*sp + 4*half + i for i in range(4)]
                t = [GT + i for i in range(4)]
                p = [GT + 4 + i for i in range(4)]
                hb = HP + 4*sp
                hp = hb + 2*half
                for i in range(4): ops.append((f"v_mul_f32 v{t[i]}, v{g[i]}, v{g[i]}", 4, None, None))
                for i in range(4): ops.append((f"v_fma_f32 v{t[i]}, v{t[i]}, v{V_C2}, v{V_C1}", 5, None, None))
                for i in range(4): ops.append((f"v_mul_f32 v{t[i]}, v{t[i]}, v{g[i]}", 4, None, None))
                for i in range(4): ops.append((f"v_exp_f32 v{t[i]}, v{t[i]}", 8, None, None))
                for i in range(4): ops.append((f"v_mul_f32 v{p[i]}, v{g[i]}, v{u[i]}", 4, None, None))
                for i in range(4): ops.append((f"v_add_f32 v{t[i]}, 1.0, v{t[i]}", 4, None, None))
                for i in range(4): ops.append((f"v_rcp_f32 v{t[i]}, v{t[i]}", 8, None, None))
                for i in range(4): ops.append((f"v_mul_f32 v{p[i]}, v{p[i]}, v{t[i]}", 4, None, None))
                ops.append((f"v_cvt_pk_bf16_f32 v{hp}, v{p[0]}, v{p[1]}", 5, None, None))
                ops.append((f"v_cvt_pk_bf16_f32 v{hp+1}, v{p[2]}, v{p[3]}", 5, None, None))
                if half == 1:
                    ops.append((f"buffer_store_dwordx4 {vr(hb,4)}, v{V_HOFF}, s[{S_H}:{S_H+3}], s{so} offen offset:{sp*1024} {HSTORE_FLAGS}", 20, "st", None))
    return ops
def gelu_full(): return gelu_ops([(P_SET, P_SET+32, S_HO0), (P_SET+16, P_SET+48, S_HO1)])
def gelu_half(): return gelu_ops([(A_SET, A_SET+32, S_HOH)])

BUDGET = 24
def unit(a, mode, override=None, stamps=False, fc=0):
    first = mode == "first"; half = mode == "half"
    G = 2 if half else 4
    NG = 36*G
    fixed = [[] for _ in range(NG)]
    for s in range(36):
        s2 = s + 2
        areg = None
        if s2 < 36:
            c2 = s2 // 4; slot = SG[c2] if first else c2; rtag = f"r{s2}"
        else:
            if half: continue
            slot = 0; rtag = f"r{s2-36}"
            if not first: areg = V_TRN
        for k in range(4):
            fixed[G*s + (k*G)//4].append((wread(s2 % 36, k, slot, areg), 4, None, rtag))
        if first and s2 < 36:
            for tt in range(2):
                fixed[4*s+tt].append((xread(s2, tt), 4, None, rtag))
    def put(step, items, m=None):
        if m is None:
            cand = (1, 3, 2, 0) if G == 4 else (1, 0)
            m = min(cand, key=lambda mm: sum(x[1] for x in fixed[G*step+mm]))
        fixed[G*step+m].extend(items)
    if first:
        k = 0
        for c in (3, 4):
            for i in range(4): put(k // 4, dma_x(c, XI[c], i, f"x{c}")); k += 1
            for i in range(4): put(k // 4, dma_w(c, SG[c], i, f"w{c}")); k += 1
        for c in range(4):
            st = 4*c + 3
            for i in range(4): put(st + i // 2, dma_x(c+5, XI[c], i, f"x{c+5}"))
            for i in range(4): put(st + 2 + i // 2, dma_w(c+5, SG[c], i, f"w{c+5}"))
        put(19, adv_w(), 0)
        for c in range(4, 7):
            st = 4*c + 3
            n0 = 2*(c-4)
            for i in range(4): put(st + i // 2, dma_w(n0, XI[c], i, f"n{n0}"))
            for i in range(4): put(st + 2 + i // 2, dma_w(n0+1, SG[c], i, f"n{n0+1}"))
    else:
        k = 0
        for c in (6, 7, 8):
            for i in range(4):
                st = [0,0,1,1, 2,3,4,5, 6,7,8,9][k]
                put(st, dma_w(c, c, i, f"c{c}")); k += 1
        if not half:
            for j, cs in ((11, (0, 1, 2)), (23, (3, 4, 5))):
                k = 0
                for c in cs:
                    for i in range(4):
                        st = j + [0,0,1,1, 2,3,4,5, 6,7,8,9][k]
                        put(st, dma_w(c, c, i, f"n{c}")); k += 1
    g_ops = [] if first else gelu_full()
    g0, g1 = G, G*35
    room = [max(2, BUDGET - sum(x[1] for x in fixed[g])) if g0 <= g < g1 else 0 for g in range(NG)]
    tot_room = sum(room); tot_cost = sum(x[1] for x in g_ops)
    gel = [[] for _ in range(NG)]
    acc_room = 0; used = 0; gi = 0
    for g in range(NG):
        acc_room += room[g]
        target = tot_cost * acc_room / tot_room if tot_room else 0
        while gi < len(g_ops) and used + g_ops[gi][1] / 2 <= target:
            gel[g].append(g_ops[gi]); used += g_ops[gi][1]; gi += 1
    assert gi == len(g_ops)
    em = Emit(a)
    for s in range(36):
        bar = (s % 4 == 3) if first else (s % 12 == 11)
        if half and s == 35: bar = False
        if bar:
            if first:
                c = s // 4
                need = (f"x{c+2}", f"w{c+2}") if c < 7 else (("n0",) if c == 7 else ("n0", "n1", "n2", "n3"))
            elif half:
                need = [("c3", "c4", "c5", "c6"), ("c7", "c8")][s // 12]
            else:
                need = [("c3", "c4", "c5", "c6"), ("c7", "c8", "n0"), ("n1", "n2", "n3")][s // 12]
            a.wait(vm=lambda t: t in need, lg=lambda t: t == f"r{s}", override=override)
            a("s_barrier")
            if first: stamp(a, stamps and s in ((35,) if FUSED[0] else (3, 19, 35)))
            if half and s == 11 and FUSED[0]:
                nf = a.newlabel("hf1")
                a(f"s_cmp_eq_u32 s{S_WAVE}, 0")
                a(f"s_cbranch_scc0 {nf}")
                a(f"v_mov_b32 v{V_T}, s{S_NONCE}")
                a(f"s_mov_b64 exec, 1\nbuffer_store_dword v{V_T}, v{V_NV+1}, s[56:59], s{S_HF} offen sc0 sc1\ns_mov_b64 exec, -1")
                a.label(nf)
            if half and s == 30 and False: pass
            if mode == "loop" and s == 11:
                a(f"s_cmp_eq_u32 s{S_CNT}, 1\ns_cselect_b32 s50, s{S_WJ}, 128\ns_ashr_i32 s51, s50, 31")
                a(f"s_add_u32 s{S_W}, s{S_W}, s50\ns_addc_u32 s{S_W+1}, s{S_W+1}, s51\ns_sub_u32 s{S_W+2}, s{S_W+2}, s50")
        else:
            a.wait(lg=lambda t: t == f"r{s}")
        if half and s == 29 and FUSED[0]:
            a(f"buffer_load_dwordx4 v[192:195], v{V_NV+1}, s[56:59], s61 offen sc0 sc1"); a.vm_issue("hf1")
        for m in range(G):
            a(mfma_half(s, m, fc) if half else mfma(s, m, s == 0, s == 35))
            em(fixed[G*s+m] + gel[G*s+m])
    a.vm = [("c" + t[1:]) if t[0] == "n" else t for t in a.vm]

def ut_code(a, name):
    T = V_T; L_ = V_LANE
    a(f"v_lshrrev_b32 v{T}, 4, v{L_}")
    a(f"v_bfe_u32 v{T+1}, v{L_}, 2, 2")
    a(f"v_lshlrev_b32 v{T+2}, 3, v{T}")
    a(f"v_add_u32 v{T+2}, v{T+2}, v{T+1}")
    a(f"v_lshlrev_b32 v{T+2}, 7, v{T+2}")
    a(f"s_lshl_b32 s53, s{S_WAVE}, 12\ns_add_u32 s53, s53, s51")
    a(f"v_add_u32 v{T+2}, s53, v{T+2}")
    a(f"v_and_b32 v{T+3}, 1, v{L_}")
    a(f"v_lshlrev_b32 v{T+3}, 3, v{T+3}")
    a(f"v_add_u32 v{T+2}, v{T+2}, v{T+3}")
    a(f"v_lshlrev_b32 v{T+3}, 2, v{T}")
    a(f"v_lshrrev_b32 v{T+1}, 1, v{T+1}")
    a(f"v_add_u32 v{T+3}, v{T+3}, v{T+1}")
    a(f"v_bfe_u32 v{T+4}, v{L_}, 1, 1")
    a(f"v_and_b32 v{T+5}, 7, v{T+3}")
    a(f"v_xor_b32 v{T+5}, v{T+5}, v{T+4}")
    a(f"v_lshlrev_b32 v{T+5}, 4, v{T+5}")
    a(f"v_add_u32 v{T+3}, 2, v{T+3}")
    a(f"v_and_b32 v{T+3}, 7, v{T+3}")
    a(f"v_xor_b32 v{T+3}, v{T+3}, v{T+4}")
    a(f"v_lshlrev_b32 v{T+3}, 4, v{T+3}")
    D = A_SET
    for cg in range(4):
        a(f"v_xor_b32 v{T+6}, {cg*32}, v{T+5}\nv_add_u32 v{T+6}, v{T+6}, v{T+2}")
        a(f"v_xor_b32 v{T+7}, {cg*32}, v{T+3}\nv_add_u32 v{T+7}, v{T+7}, v{T+2}")
        a(f"ds_read_b64_tr_b16 {vr(D+4*cg,2)}, v{T+6}")
        a(f"ds_read_b64_tr_b16 {vr(D+4*cg+2,2)}, v{T+7} offset:512")
    a(f"v_and_b32 v{T+6}, 15, v{L_}\nv_lshlrev_b32 v{T+6}, 12, v{T+6}\nv_lshlrev_b32 v{T+7}, 4, v{T}\nv_add_u32 v{T+6}, v{T+6}, v{T+7}")
    a(f"s_add_u32 s56, s4, {WS_UT}\ns_addc_u32 s57, s5, 0\ns_mov_b32 s58, {UT_BYTES}\ns_mov_b32 s59, 0x20000")
    a(f"s_lshl_b32 s52, s52, 18\ns_lshl_b32 s53, s{S_MT}, 8\ns_add_u32 s52, s52, s53\ns_lshl_b32 s53, s{S_WAVE}, 6\ns_add_u32 s52, s52, s53")
    a("s_waitcnt lgkmcnt(0)")
    for cg in range(4):
        a(f"s_add_u32 s53, s52, {cg*16*4096}")
        a(f"buffer_store_dwordx4 {vr(D+4*cg,4)}, v{T+6}, s[56:59], s53 offen {HSTORE_FLAGS}")

S_HF = 64
S_NONCE = 65
def gen_k1(a, name, stamps=False, fused=False):
    NST[0] = 0
    FUSED[0] = fused
    L_ = V_LANE; T = V_T
    a(f".globl {name}\n.p2align 8\n.type {name},@function")
    a.label(name)
    a("s_cmp_ge_u32 s2, 256")
    a(f"s_cbranch_scc1 {name}_end")
    a(f"s_load_dwordx2 s[8:9], s[0:1], {KA_U}")
    a(f"s_load_dwordx4 s[64:67], s[0:1], {KA_WG}")
    a(f"s_load_dwordx2 s[4:5], s[0:1], {KA_WS}")
    if fused: a(f"s_load_dwordx2 s[6:7], s[0:1], {KA_DBG}")
    kg = kgen.KGen(a, 0, 62, S_FC, 63, 55, V_LANE, S_KG, "kmap_table")
    kg.sloads()
    stamp_init(a, stamps)
    stamp(a, stamps)
    if fused: SKIP[0] = 1
    a(f"v_and_b32 v{V_LANE}, 63, v0")
    a(f"v_lshrrev_b32 v{V_T}, 6, v0")
    a("s_nop 0")
    a(f"v_readfirstlane_b32 s{S_WAVE}, v{V_T}")
    a("s_and_b32 s3, s2, 7")
    a("s_lshr_b32 s50, s2, 3")
    a("s_and_b32 s51, s3, 1\ns_lshl_b32 s51, s51, 3")
    a("s_and_b32 s52, s50, 7")
    a(f"s_add_u32 s{S_MT}, s51, s52")
    a("s_lshr_b32 s53, s50, 3")
    a("s_lshr_b32 s54, s3, 1")
    a("s_lshl_b32 s55, s54, 2\ns_add_u32 s55, s55, s53")
    a("s_and_b32 s56, s55, 1")
    a("s_mul_i32 s57, s55, 9\ns_add_u32 s57, s57, s56\ns_lshr_b32 s57, s57, 1")
    a(f"s_movk_i32 s59, 128\ns_cmp_eq_u32 s56, 0\ns_cselect_b32 s58, 4, -1\ns_cselect_b32 s{S_WJ}, s59, -512\ns_add_u32 s58, s57, s58")
    a(f"s_and_b32 s{S_FC}, s{S_WAVE}, 1\ns_lshr_b32 s{S_TR}, s{S_WAVE}, 1")
    a(f"s_xor_b32 s{S_HX}, s{S_FC}, s56\ns_lshl_b32 s{S_HX}, s{S_HX}, 6")
    a(f"s_lshl_b32 s59, s{S_MT}, 2\ns_lshl_b32 s60, s{S_TR}, 1\ns_add_u32 s59, s59, s60")
    a(f"s_mul_i32 s60, s59, 288\ns_lshl_b32 s61, s{S_FC}, 1\ns_add_u32 s60, s60, s61\ns_lshl_b32 s60, s60, 10\ns_lshl_b32 s61, s57, 12\ns_add_u32 s{S_HO0}, s60, s61")
    a(f"s_add_u32 s{S_HO1}, s{S_HO0}, {288*1024}")
    a(f"s_add_u32 s59, s59, s{S_FC}\ns_mul_i32 s59, s59, 288\ns_lshl_b32 s60, s58, 2\ns_add_u32 s59, s59, s60\ns_lshl_b32 s60, s56, 1\ns_add_u32 s59, s59, s60\ns_lshl_b32 s{S_HOH}, s59, 10")
    a(f"s_lshl_b32 s{S_M0W}, s{S_WAVE}, 12")
    a(f"s_lshl_b32 s58, s{S_MT}, 7\ns_lshl_b32 s59, s{S_WAVE}, 5\ns_add_u32 s58, s58, s59\ns_mul_i32 s{S_XB}, s58, 1152")
    a("s_lshl_b32 s58, s53, 1\ns_add_u32 s58, s58, s52\ns_cmp_eq_u32 s54, 2\ns_cselect_b32 s59, 2, 0\ns_add_u32 s58, s58, s59")
    a("s_cmp_ge_u32 s58, 9\ns_cselect_b32 s59, 9, 0\ns_sub_u32 s58, s58, s59")
    a("s_mov_b32 s61, s58")
    a(f"s_mul_i32 s60, s{S_FC}, 294912")
    for j in range(9):
        a(f"s_mul_i32 s59, s58, 589824\ns_add_u32 s{S_WC+j}, s59, s60")
        a(f"s_lshl_b32 s59, s58, 7\ns_add_u32 s{S_XC+j}, s59, s{S_XB}")
        if j < 8:
            a("s_add_u32 s58, s58, 1\ns_cmp_eq_u32 s58, 9\ns_cselect_b32 s58, 0, s58")
    a(f"s_lshl_b32 s62, s2, 1\ns_add_u32 s62, s62, s{S_TR}")
    a(f"s_lshl_b32 s63, s{S_WAVE}, 14\ns_cmp_ge_u32 s{S_WAVE}, 2\ns_cselect_b32 s59, {6*16384}, 0\ns_add_u32 s63, s63, s59")
    a("s_xor_b32 s55, s63, 16384")
    a("s_movk_i32 s60, 9216")
    a(f"v_lshrrev_b32 v{T+4}, 3, v{L_}")
    a(f"v_mul_lo_u32 v{V_WO}, v{T+4}, s60")
    a(f"v_lshrrev_b32 v{T+5}, 4, v{L_}")
    a(f"v_and_b32 v{T+6}, 1, v{T+5}")
    a(f"v_lshlrev_b32 v{T+6}, 2, v{T+6}")
    a(f"v_and_b32 v{T+7}, 7, v{L_}")
    a(f"v_xor_b32 v{T+6}, v{T+6}, v{T+7}")
    a(f"v_lshlrev_b32 v{T+6}, 4, v{T+6}")
    a(f"v_add_u32 v{V_WO}, v{V_WO}, v{T+6}")
    for i in range(1, 4):
        a(f"v_add_u32 v{V_WO+i}, {i*(73728-1024)}, v{V_WO}")
    a(f"v_mul_u32_u24 v{T+8}, 1152, v{T+4}")
    a(f"v_xor_b32 v{T+6}, v{T+7}, v{T+5}")
    a(f"v_lshlrev_b32 v{T+6}, 4, v{T+6}")
    a(f"v_add_u32 v{V_XO}, v{T+8}, v{T+6}")
    a(f"v_xor_b32 v{T+6}, 64, v{T+6}")
    a(f"v_add_u32 v{V_XO+1}, v{T+8}, v{T+6}")
    a(f"v_add_u32 v{V_XO+1}, {9216-1024}, v{V_XO+1}")
    a(f"v_add_u32 v{V_XO+2}, {2*(9216-1024)}, v{V_XO}")
    a(f"v_add_u32 v{V_XO+3}, {2*(9216-1024)}, v{V_XO+1}")
    a("s_waitcnt lgkmcnt(0)")
    stamp(a, stamps)
    a(f"s_mov_b32 s10, {X_BYTES}\ns_mov_b32 s11, 0x20000")
    a(f"s_cmp_lt_u32 s{S_WAVE}, 2")
    a("s_cselect_b32 s12, s64, s66\ns_cselect_b32 s13, s65, s67")
    a("s_lshl_b32 s58, s57, 7")
    a("s_add_u32 s12, s12, s58\ns_addc_u32 s13, s13, 0")
    a(f"s_sub_u32 s14, {W_BYTES}, s58\ns_mov_b32 s15, 0x20000")
    kg.issue_params(pb=0)
    if fused:
        a(f"s_lshl_b32 s{S_HF}, s{S_MT}, 2\ns_add_u32 s{S_HF}, s{S_HF}, s54\ns_lshl_b32 s{S_HF}, s{S_HF}, 2\ns_add_u32 s{S_HF}, s{S_HF}, s53\ns_lshl_b32 s{S_HF}, s{S_HF}, 2")
        a(f"s_or_b32 s58, s2, s{S_WAVE}\ns_cmp_eq_u32 s58, 0")
        a(f"s_cbranch_scc0 {name}_nononce")
        a("s_memrealtime s[58:59]")
        a("s_waitcnt lgkmcnt(0)")
        a("s_lshl_b32 s58, s58, 1\ns_or_b32 s58, s58, 1")
        a("s_mov_b32 s56, s6\ns_mov_b32 s57, s7\ns_mov_b32 s59, 0x20000\nv_mov_b32 v190, s58\ns_mov_b32 s58, 256\nv_mov_b32 v191, 0")
        a("s_mov_b64 exec, 1\nbuffer_store_dword v190, v191, s[56:59], 0 offen sc0 sc1\ns_mov_b64 exec, -1")
        a.label(f"{name}_nononce")
    emit = Emit(a)
    for c in range(1):
        for i in range(4): emit(dma_x(c, XI[c], i, f"x{c}"))
        for i in range(4): emit(dma_w(c, SG[c], i, f"w{c}"))
    stamp(a, stamps)
    def grp_of(c):
        g = []
        for i in range(4):
            it = dma_x(c, XI[c], i, f"x{c}")[0]
            g.append(([f"s_add_u32 m0, s{S_M0W}, {XI[c]*16384}", "s_nop 0"] if i == 0 else []) + [it[0][1]])
        for i in range(4):
            it = dma_w(c, SG[c], i, f"w{c}")[0]
            g.append(([f"s_add_u32 m0, s{S_M0W}, {SG[c]*16384}", "s_nop 0"] if i == 0 else []) + [it[0][1]])
        return g
    for c in (1, 2):
        for i in range(4): a.vm_issue(f"x{c}")
        for i in range(4): a.vm_issue(f"w{c}")
    if "kgA" in OPT:
        kg.compute(wait_params=8, wait_map=8, pb=0, pre=(), extra=(), post=grp_of(1) + kg.map_groups() + grp_of(2), st=(lambda: stamp(a, stamps and NST[0] < 6)))
    elif "kgB" in OPT:
        for g in grp_of(1):
            for x in g: a(x)
        kg.compute(wait_params=16, wait_map=8, pb=0, pre=(), extra=kg.map_groups(), post=grp_of(2), st=(lambda: stamp(a, stamps and NST[0] < 6)))
    else:
        kg.compute(wait_params=8, wait_map=8, pb=0, pre=grp_of(1), extra=kg.map_groups(), post=grp_of(2), st=(lambda: stamp(a, stamps and NST[0] < 6)))
    if fused:
        SKIP[0] = 0; NST[0] = 1
    else:
        NST[0] = 6
    stamp_init2(a, stamps)
    stamp(a, stamps)
    if fused:
        a("s_mov_b32 s56, s6\ns_mov_b32 s57, s7\ns_mov_b32 s58, 256\ns_mov_b32 s59, 0x20000")
        a(f"v_mov_b32 v{V_NV+1}, 0")
        a(f"buffer_load_dword v{V_NV}, v{V_NV+1}, s[56:59], 0 offen sc0 sc1")
    a(f"s_add_u32 s16, s4, {WS_H}\ns_addc_u32 s17, s5, 0" if WS_H else "s_mov_b32 s16, s4\ns_mov_b32 s17, s5")
    a(f"s_mov_b32 s18, {H_BYTES}\ns_mov_b32 s19, 0x20000")
    a(f"v_lshlrev_b32 v{V_HOFF}, 4, v{L_}")
    a(f"v_mov_b32 v{V_C2}, 0x{f2u(GELU_C2):08x}")
    a(f"v_mov_b32 v{V_C1}, 0x{f2u(GELU_C1):08x}")
    a(f"v_lshrrev_b32 v{T}, 5, v{L_}")
    a(f"v_lshlrev_b32 v{T}, 3, v{T}")
    a(f"v_bfe_u32 v{T+2}, v{L_}, 2, 2")
    a(f"v_add_u32 v{T}, v{T}, v{T+2}")
    a(f"v_lshlrev_b32 v{T}, 7, v{T}")
    a(f"v_bfe_u32 v{T+3}, v{L_}, 4, 1")
    a(f"v_lshlrev_b32 v{T+3}, 1, v{T+3}")
    a(f"v_bfe_u32 v{T+4}, v{L_}, 1, 1")
    a(f"v_add_u32 v{T+3}, v{T+3}, v{T+4}")
    a(f"s_lshl_b32 s58, s{S_FC}, 2")
    a(f"v_add_u32 v{T+3}, s58, v{T+3}")
    a(f"v_lshrrev_b32 v{T+2}, 1, v{T+2}")
    a(f"v_lshlrev_b32 v{T+2}, 2, v{T+2}")
    a(f"v_xor_b32 v{T+3}, v{T+3}, v{T+2}")
    a(f"v_lshlrev_b32 v{T+3}, 4, v{T+3}")
    a(f"v_add_u32 v{T}, v{T}, v{T+3}")
    a(f"v_and_b32 v{T+4}, 1, v{L_}")
    a(f"v_lshlrev_b32 v{T+4}, 3, v{T+4}")
    a(f"v_add_u32 v{V_TR}, v{T}, v{T+4}")
    a(f"v_add_u32 v{V_TR+1}, 0x10000, v{V_TR}")
    a(f"v_add_u32 v{V_TR+2}, 0x20000, v{V_TR}")
    a(f"v_mov_b32 v{V_TRN}, v{V_TR}")
    a(f"v_and_b32 v{T}, 31, v{L_}")
    a(f"v_bfe_u32 v{T+1}, v{L_}, 1, 3")
    a(f"v_lshrrev_b32 v{T+2}, 5, v{L_}")
    a(f"v_xor_b32 v{T+1}, v{T+1}, v{T+2}")
    a(f"v_lshlrev_b32 v{T+1}, 4, v{T+1}")
    a(f"s_lshl_b32 s58, s{S_TR}, 6")
    a(f"v_add_u32 v{T}, s58, v{T}")
    a(f"v_lshlrev_b32 v{T}, 7, v{T}")
    a(f"v_add_u32 v{T}, v{T}, v{T+1}")
    for sp in range(4):
        a(f"v_xor_b32 v{V_XR+sp}, {sp<<5}, v{T}")
        a(f"v_add_u32 v{V_XR+4+sp}, 0x10000, v{V_XR+sp}")
        a(f"v_add_u32 v{V_XR+8+sp}, 0x20000, v{V_XR+sp}")
    a.wait(vm=lambda t: t in ("x0", "w0", "x1", "w1"), lg0=True)
    a("s_barrier")
    stamp(a, stamps)
    a("s_cmp_eq_u32 s54, 3")
    a(f"s_cbranch_scc1 {name}_nout")
    a("s_cmp_eq_u32 s54, 2\ns_cselect_b32 s50, 1, 0\ns_cmp_eq_u32 s53, 3\ns_cselect_b32 s51, 0, s50\ns_cmp_eq_u32 s51, 1")
    a(f"s_cbranch_scc1 {name}_nout")
    a(f"s_cmp_eq_u32 s54, 1\ns_cselect_b32 s50, 1, 0")
    a(f"s_lshl_b32 s51, s50, 15\ns_add_u32 s51, s51, {XI[0]*16384}")
    a("s_add_u32 s52, s61, s50\ns_cmp_eq_u32 s52, 9\ns_cselect_b32 s52, 0, s52")
    ut_code(a, name)
    a.label(f"{name}_nout")
    for s in range(2):
        for k in range(4): a(wread(s, k, SG[0])); a.lg_issue(f"r{s}")
        for tt in range(2): a(xread(s, tt)); a.lg_issue(f"r{s}")
    unit(a, "first", stamps=stamps)
    if fused:
        lab = a.newlabel(name + "_np"); ok = a.newlabel(name + "_nok")
        a("s_mov_b32 s60, 0x40000")
        a.label(lab)
        a(f"v_readfirstlane_b32 s{S_NONCE}, v{V_NV}")
        a("s_nop 3")
        a(f"s_cmp_lg_u32 s{S_NONCE}, 0")
        a(f"s_cbranch_scc1 {ok}")
        a("s_sleep 2")
        a("s_mov_b32 s56, s6\ns_mov_b32 s57, s7\ns_mov_b32 s58, 256\ns_mov_b32 s59, 0x20000")
        a(f"buffer_load_dword v{V_NV}, v{V_NV+1}, s[56:59], 0 offen sc0 sc1")
        a("s_waitcnt vmcnt(0)")
        a("s_sub_u32 s60, s60, 1\ns_cmp_lg_u32 s60, 0")
        a(f"s_cbranch_scc1 {lab}")
        a.label(ok)
        nf = a.newlabel(name + "_nsf")
        a(f"s_cmp_eq_u32 s{S_WAVE}, 0")
        a(f"s_cbranch_scc0 {nf}")
        a(f"s_add_u32 s56, s4, {WS_FLAG}\ns_addc_u32 s57, s5, 0\ns_mov_b32 s58, {FLAG_BYTES}\ns_mov_b32 s59, 0x20000")
        a(f"s_lshl_b32 s60, s2, 2\ns_add_u32 s60, s60, {FL_S}\nv_mov_b32 v{V_T}, s{S_NONCE}")
        a(f"s_mov_b64 exec, 1\nbuffer_store_dword v{V_T}, v{V_NV+1}, s[56:59], s60 offen sc0 sc1\ns_mov_b64 exec, -1")
        a.label(nf)
    a(f"s_mov_b32 s{S_CNT}, 3")
    sv_vm, sv_lg = list(a.vm), list(a.lg)
    a.mute = True
    a.waits = []; unit(a, "loop"); w1 = list(a.waits)
    a.waits = []; unit(a, "loop"); w2 = list(a.waits)
    a.waits = []; unit(a, "loop"); w3 = list(a.waits)
    assert w2 == w3
    a.mute = False
    ov = [min([v for v in (x, y) if v is not None], default=None) for x, y in zip(w1, w2)]
    a.vm, a.lg = sv_vm, sv_lg
    a(".p2align 6")
    a.label(f"{name}_loop")
    a(f"s_cmp_eq_u32 s{S_CNT}, 1\ns_cselect_b32 s50, s{S_HX}, 0\nv_xor_b32 v{V_TRN}, s50, v{V_TR}")
    unit(a, "loop", override=list(ov))
    a(f"s_add_u32 s{S_HO0}, s{S_HO0}, 4096")
    a(f"s_add_u32 s{S_HO1}, s{S_HO1}, 4096")
    a(f"s_sub_u32 s{S_CNT}, s{S_CNT}, 1")
    a(f"s_cmp_lg_u32 s{S_CNT}, 0")
    a(f"s_cbranch_scc1 {name}_loop")
    stamp(a, stamps)
    if fused:
        a(f"s_add_u32 s56, s4, {WS_FLAG}\ns_addc_u32 s57, s5, 0\ns_mov_b32 s58, {FLAG_BYTES}\ns_mov_b32 s59, 0x20000\ns_movk_i32 s60, {FL_S}")
        a(f"buffer_load_dwordx4 v[196:199], v{V_HOFF}, s[56:59], s60 offen sc0 sc1"); a.vm_issue("sf")
        a("s_lshr_b32 s60, s2, 3\ns_and_b32 s60, s60, 7\ns_and_b32 s61, s3, 1\ns_lshl_b32 s61, s61, 3\ns_add_u32 s61, s61, s60")
        a("s_lshl_b32 s61, s61, 2\ns_lshr_b32 s60, s3, 1\ns_add_u32 s61, s61, s60\ns_lshl_b32 s61, s61, 4")
    for w in range(3): a(f"v_xor_b32 v{V_TR+w}, s{S_HX}, v{V_TR+w}")
    a(f"s_cmp_eq_u32 s{S_FC}, 1")
    a(f"s_cbranch_scc1 {name}_half1")
    sv_vm, sv_lg = list(a.vm), list(a.lg)
    unit(a, "half", fc=0)
    a(f"s_branch {name}_halfdone")
    a.label(f"{name}_half1")
    a.vm, a.lg = sv_vm, sv_lg
    unit(a, "half", fc=1)
    a.label(f"{name}_halfdone")
    stamp(a, stamps)
    if fused: return
    a("s_nop 7\ns_nop 7")
    for ins, cost, vt, lt in gelu_half():
        a(ins)
    a.wait_all()
    stamp(a, stamps)
    if stamps: stamp_store2(a, 0)
    a.label(f"{name}_end")
    a("s_endpgm")
```

```python
L = 2048; D = 576; F = 4608; N = 128
WS_H    = 0
H_BYTES = 64*288*1024
WS_PART = 0x1200000
PART_BYTES = 4*64*18*4096
WS_KREV = 0x2400000
KREV_PITCH = 4160
KREV_BYTES = 576*KREV_PITCH
WS_UT   = 0x2700000
UT_BYTES = 576*4096
WS_YT   = 0x2A00000
WS_G    = 0x2D00000
X_BYTES = 2048*576*2
W_BYTES = 576*4608*2
KA_U, KA_LAR, KA_AIM, KA_CR, KA_CI, KA_LDT, KA_DSK, KA_BX, KA_WG, KA_WU, KA_WD, KA_GW, KA_OUT, KA_DBG, KA_WS = [8*i for i in range(15)]
WS_FLAG = 0x2E00000
FL_H = 0
FL_P = 1024
FL_Y = 1792
FL_G = 4096
FLAG_BYTES = 8192
FL_S = 5120
FL_H2 = 6144
```

```python
import sys, os
sys.path.insert(0, os.path.dirname(__file__))
from asmlib import *
from layout import *
import k1, kgen, fused
NAME = "gated_mix__ssm_conv_s4d__geglu_ffn__prompt_kernel"
def build(path, stamps=False):
    a = Asm()
    hdr = open("gated_mix__ssm_conv_s4d__geglu_ffn__prompt.s.ref").read().split("\n")
    for l in hdr:
        if l.startswith("; Kernarg") or l.startswith(";   offset"):
            a.lines.append(l)
    a.lines.append("; @launch grid=(256,1,1) block=(256,1,1) lds=163840")
    a.lines.append('.amdgcn_target "amdgcn-amd-amdhsa--gfx950"')
    a.lines.append(".text")
    fused.gen_fused(a, NAME, stamps=stamps)
    kgen.emit_kmap(a, "kmap_table")
    a.lines.append(kernel_desc(NAME, 512, 102, 256))
    open(path, "w").write(a.text())
    print("wrote", path, "lines", len(a.lines))
if __name__ == "__main__":
    build(sys.argv[1], stamps=(len(sys.argv) > 2 and sys.argv[2] == "stamps"))
```

```python
from asmlib import *
from layout import *
import kgen
import os, struct
OPT = set(os.environ.get("K1OPT", "").split(","))
def f2u(x): return struct.unpack("<I", struct.pack("<f", x))[0]

A_SET = 0
P_SET = 64
WF = 128
GT = 152
HP = 160
V_TR = 168
V_WO = 171
V_XO = 175
V_HOFF = 179
V_C2 = 180
V_C1 = 181
V_LANE = 182
V_TRN = 183
V_T = 186
V_NV = 184
XV = 224
V_XR = P_SET

S_X, S_W, S_H = 8, 12, 16
S_WAVE, S_MT, S_FC, S_TR, S_CNT, S_M0W, S_XB, S_HO0, S_HO1, S_HOH, S_HX, S_WJ = range(20, 32)
S_WC = 32
S_XC = 41
S_KG = 68

def XF(s, tt):
    if s < 32: return ar(8*s + 4*tt, 4)
    return vr(XV + 8*(s-32) + 4*tt, 4)

XI = [2, 4, 6, 8, 0, 2, 4, 6, 8]
SG = [3, 5, 7, 9, 1, 3, 5, 7, 9]

GELU_C1 = -2.0 * 0.7978845608028654 * 1.4426950408889634
GELU_C2 = GELU_C1 * 0.044715
HSTORE_FLAGS = os.environ.get("HFLAGS", "sc1")

NST = [0]
def streg(i):
    assert i < 16
    return 88 + 2*i if i < 6 else 68 + 2*(i-6)
SKIP = [0]
FUSED = [False]
def stamp(a, on):
    if not on: return
    if SKIP[0]: return
    i = NST[0]; NST[0] += 1
    a(f"s_memrealtime s[{streg(i)}:{streg(i)+1}]")
def stamp_cyc(a, on):
    if not on: return
    i = NST[0]; NST[0] += 1
    a(f"s_memtime s[{streg(i)}:{streg(i)+1}]")
def stamp_init(a, on):
    if not on: return
    for i in range(6): a(f"s_mov_b32 s{streg(i)}, -1")
def stamp_init2(a, on):
    if not on: return
    for i in range(6, 16): a(f"s_mov_b32 s{streg(i)}, -1")
def stamp_store2(a, kidx=0, vlane=None, vt=200, swave=None):
    n = NST[0]
    vlane = V_LANE if vlane is None else vlane
    swave = S_WAVE if swave is None else swave
    a("s_waitcnt lgkmcnt(0)")
    a(f"s_add_u32 s56, s4, {0x3100000 + kidx*0x40000}\ns_addc_u32 s57, s5, 0\ns_mov_b32 s58, 0x40000\ns_mov_b32 s59, 0x20000")
    a(f"s_lshl_b32 s50, s2, 2\ns_add_u32 s50, s50, s{swave}\ns_lshl_b32 s50, s50, 7")
    a(f"v_mov_b32 v{vt}, s50")
    a(f"v_cmp_eq_u32 vcc, 0, v{vlane}")
    a("s_and_saveexec_b64 s[52:53], vcc")
    for i in range(n):
        a(f"v_mov_b32 v{vt+1}, s{streg(i)}")
        a(f"buffer_store_dword v{vt+1}, v{vt}, s[56:59], 0 offen offset:{4*i}")
    a("s_mov_b64 exec, s[52:53]")

def dma_w(c, slot, i, tag):
    return [((slot, f"buffer_load_dwordx4 v{V_WO+i}, s[{S_W}:{S_W+3}], s{S_WC+c} offen offset:{i*1024} lds"), 8 + (8 if i == 0 else 0), tag, None)]
def dma_x(c, slot, i, tag):
    return [((slot, f"buffer_load_dwordx4 v{V_XO+i}, s[{S_X}:{S_X+3}], s{S_XC+c} offen offset:{i*1024} lds"), 8 + (8 if i == 0 else 0), tag, None)]
class Emit:
    def __init__(self, a):
        self.a = a; self.m0 = None
    def __call__(self, items):
        a = self.a
        for (ins, cost, vt, lt) in items:
            if isinstance(ins, tuple):
                slot, txt = ins
                if self.m0 != slot:
                    a(f"s_add_u32 m0, s{S_M0W}, {slot*16384}"); self.m0 = slot
                    a("s_nop 0")
                a(txt)
            else:
                a(ins)
            if vt: a.vm_issue(vt)
            if lt: a.lg_issue(lt)
def adv_w():
    return [(f"s_add_u32 s{S_W}, s{S_W}, 128", 4, None, None), (f"s_addc_u32 s{S_W+1}, s{S_W+1}, 0", 4, None, None),
            (f"s_sub_u32 s{S_W+2}, s{S_W+2}, 128", 4, None, None)]

def wread(s, k, slot, areg=None):
    mat, rd = k >> 1, k & 1
    sp = s % 4
    off = slot*16384 + mat*8192 + sp*2048 + rd*512
    win, off = off >> 16, off & 0xffff
    dst = WF + 8*(s % 3) + 4*mat + 2*rd
    r = V_TR + win if areg is None else areg
    return f"ds_read_b64_tr_b16 {vr(dst,2)}, v{r} offset:{off}"

def xread(s, tt):
    c = s // 4; sp = s % 4
    off = XI[c]*16384 + tt*4096
    win, off = off >> 16, off & 0xffff
    return f"ds_read_b128 {XF(s,tt)}, v{V_XR + 4*win + sp} offset:{off}"

def mfma(s, m, first_c0, last_to_p):
    tt, mat = [(0,0),(0,1),(1,1),(1,0)][m]
    acc = A_SET + 32*mat + 16*tt
    dst = (P_SET + 32*mat + 16*tt) if last_to_p else acc
    src = "0" if first_c0 else vr(acc, 16)
    wf = WF + 8*(s % 3) + 4*mat
    return f"v_mfma_f32_32x32x16_bf16 {vr(dst,16)}, {vr(wf,4)}, {XF(s,tt)}, {src}"
def mfma_half(s, mat, fc):
    acc = A_SET + 32*mat
    src = "0" if s == 0 else vr(acc, 16)
    wf = WF + 8*(s % 3) + 4*mat
    return f"v_mfma_f32_32x32x16_bf16 {vr(acc,16)}, {vr(wf,4)}, {XF(s,fc)}, {src}"

def gelu_ops(tiles):
    ops = []; gi = 0
    for (gb, ub, so) in tiles:
        for sp in range(2):
            for half in range(2):
                g = [gb + 8*sp + 4*half + i for i in range(4)]
                u = [ub + 8*sp + 4*half + i for i in range(4)]
                t = [GT + i for i in range(4)]
                p = [GT + 4 + i for i in range(4)]
                hb = HP + 4*sp
                hp = hb + 2*half
                for i in range(4): ops.append((f"v_mul_f32 v{t[i]}, v{g[i]}, v{g[i]}", 4, None, None))
                for i in range(4): ops.append((f"v_fma_f32 v{t[i]}, v{t[i]}, v{V_C2}, v{V_C1}", 5, None, None))
                for i in range(4): ops.append((f"v_mul_f32 v{t[i]}, v{t[i]}, v{g[i]}", 4, None, None))
                for i in range(4): ops.append((f"v_exp_f32 v{t[i]}, v{t[i]}", 8, None, None))
                for i in range(4): ops.append((f"v_mul_f32 v{p[i]}, v{g[i]}, v{u[i]}", 4, None, None))
                for i in range(4): ops.append((f"v_add_f32 v{t[i]}, 1.0, v{t[i]}", 4, None, None))
                for i in range(4): ops.append((f"v_rcp_f32 v{t[i]}, v{t[i]}", 8, None, None))
                for i in range(4): ops.append((f"v_mul_f32 v{p[i]}, v{p[i]}, v{t[i]}", 4, None, None))
                ops.append((f"v_cvt_pk_bf16_f32 v{hp}, v{p[0]}, v{p[1]}", 5, None, None))
                ops.append((f"v_cvt_pk_bf16_f32 v{hp+1}, v{p[2]}, v{p[3]}", 5, None, None))
                if half == 1:
                    ops.append((f"buffer_store_dwordx4 {vr(hb,4)}, v{V_HOFF}, s[{S_H}:{S_H+3}], s{so} offen offset:{sp*1024} {HSTORE_FLAGS}", 20, "st", None))
    return ops
def gelu_full(): return gelu_ops([(P_SET, P_SET+32, S_HO0), (P_SET+16, P_SET+48, S_HO1)])
def gelu_half(): return gelu_ops([(A_SET, A_SET+32, S_HOH)])

BUDGET = 24
def unit(a, mode, override=None, stamps=False, fc=0):
    first = mode == "first"; half = mode == "half"
    G = 2 if half else 4
    NG = 36*G
    fixed = [[] for _ in range(NG)]
    for s in range(36):
        s2 = s + 2
        areg = None
        if s2 < 36:
            c2 = s2 // 4; slot = SG[c2] if first else c2; rtag = f"r{s2}"
        else:
            if half: continue
            slot = 0; rtag = f"r{s2-36}"
            if not first: areg = V_TRN
        for k in range(4):
            fixed[G*s + (k*G)//4].append((wread(s2 % 36, k, slot, areg), 4, None, rtag))
        if first and s2 < 36:
            for tt in range(2):
                fixed[4*s+tt].append((xread(s2, tt), 4, None, rtag))
    def put(step, items, m=None):
        if m is None:
            cand = (1, 3, 2, 0) if G == 4 else (1, 0)
            m = min(cand, key=lambda mm: sum(x[1] for x in fixed[G*step+mm]))
        fixed[G*step+m].extend(items)
    if first:
        k = 0
        for c in (3, 4):
            for i in range(4): put(k // 4, dma_x(c, XI[c], i, f"x{c}")); k += 1
            for i in range(4): put(k // 4, dma_w(c, SG[c], i, f"w{c}")); k += 1
        for c in range(4):
            st = 4*c + 3
            for i in range(4): put(st + i // 2, dma_x(c+5, XI[c], i, f"x{c+5}"))
            for i in range(4): put(st + 2 + i // 2, dma_w(c+5, SG[c], i, f"w{c+5}"))
        put(19, adv_w(), 0)
        for c in range(4, 7):
            st = 4*c + 3
            n0 = 2*(c-4)
            for i in range(4): put(st + i // 2, dma_w(n0, XI[c], i, f"n{n0}"))
            for i in range(4): put(st + 2 + i // 2, dma_w(n0+1, SG[c], i, f"n{n0+1}"))
    else:
        k = 0
        for c in (6, 7, 8):
            for i in range(4):
                st = [0,0,1,1, 2,3,4,5, 6,7,8,9][k]
                put(st, dma_w(c, c, i, f"c{c}")); k += 1
        if not half:
            for j, cs in ((11, (0, 1, 2)), (23, (3, 4, 5))):
                k = 0
                for c in cs:
                    for i in range(4):
                        st = j + [0,0,1,1, 2,3,4,5, 6,7,8,9][k]
                        put(st, dma_w(c, c, i, f"n{c}")); k += 1
    g_ops = [] if first else gelu_full()
    g0, g1 = G, G*35
    room = [max(2, BUDGET - sum(x[1] for x in fixed[g])) if g0 <= g < g1 else 0 for g in range(NG)]
    tot_room = sum(room); tot_cost = sum(x[1] for x in g_ops)
    gel = [[] for _ in range(NG)]
    acc_room = 0; used = 0; gi = 0
    for g in range(NG):
        acc_room += room[g]
        target = tot_cost * acc_room / tot_room if tot_room else 0
        while gi < len(g_ops) and used + g_ops[gi][1] / 2 <= target:
            gel[g].append(g_ops[gi]); used += g_ops[gi][1]; gi += 1
    assert gi == len(g_ops)
    em = Emit(a)
    for s in range(36):
        bar = (s % 4 == 3) if first else (s % 12 == 11)
        if half and s == 35: bar = False
        if bar:
            if first:
                c = s // 4
                need = (f"x{c+2}", f"w{c+2}") if c < 7 else (("n0",) if c == 7 else ("n0", "n1", "n2", "n3"))
            elif half:
                need = [("c3", "c4", "c5", "c6"), ("c7", "c8")][s // 12]
            else:
                need = [("c3", "c4", "c5", "c6"), ("c7", "c8", "n0"), ("n1", "n2", "n3")][s // 12]
            a.wait(vm=lambda t: t in need, lg=lambda t: t == f"r{s}", override=override)
            a("s_barrier")
            if first: stamp(a, stamps and s in ((35,) if FUSED[0] else (3, 19, 35)))
            if half and s == 11 and FUSED[0]:
                nf = a.newlabel("hf1")
                a(f"s_cmp_eq_u32 s{S_WAVE}, 0")
                a(f"s_cbranch_scc0 {nf}")
                a(f"v_mov_b32 v{V_T}, s{S_NONCE}")
                a(f"s_mov_b64 exec, 1\nbuffer_store_dword v{V_T}, v{V_NV+1}, s[56:59], s{S_HF} offen sc0 sc1\ns_mov_b64 exec, -1")
                a.label(nf)
            if half and s == 30 and False: pass
            if mode == "loop" and s == 11:
                a(f"s_cmp_eq_u32 s{S_CNT}, 1\ns_cselect_b32 s50, s{S_WJ}, 128\ns_ashr_i32 s51, s50, 31")
                a(f"s_add_u32 s{S_W}, s{S_W}, s50\ns_addc_u32 s{S_W+1}, s{S_W+1}, s51\ns_sub_u32 s{S_W+2}, s{S_W+2}, s50")
        else:
            a.wait(lg=lambda t: t == f"r{s}")
        if half and s == 29 and FUSED[0]:
            a(f"buffer_load_dwordx4 v[192:195], v{V_NV+1}, s[56:59], s61 offen sc0 sc1"); a.vm_issue("hf1")
        for m in range(G):
            a(mfma_half(s, m, fc) if half else mfma(s, m, s == 0, s == 35))
            em(fixed[G*s+m] + gel[G*s+m])
    a.vm = [("c" + t[1:]) if t[0] == "n" else t for t in a.vm]

def ut_code(a, name):
    T = V_T; L_ = V_LANE
    a(f"v_lshrrev_b32 v{T}, 4, v{L_}")
    a(f"v_bfe_u32 v{T+1}, v{L_}, 2, 2")
    a(f"v_lshlrev_b32 v{T+2}, 3, v{T}")
    a(f"v_add_u32 v{T+2}, v{T+2}, v{T+1}")
    a(f"v_lshlrev_b32 v{T+2}, 7, v{T+2}")
    a(f"s_lshl_b32 s53, s{S_WAVE}, 12\ns_add_u32 s53, s53, s51")
    a(f"v_add_u32 v{T+2}, s53, v{T+2}")
    a(f"v_and_b32 v{T+3}, 1, v{L_}")
    a(f"v_lshlrev_b32 v{T+3}, 3, v{T+3}")
    a(f"v_add_u32 v{T+2}, v{T+2}, v{T+3}")
    a(f"v_lshlrev_b32 v{T+3}, 2, v{T}")
    a(f"v_lshrrev_b32 v{T+1}, 1, v{T+1}")
    a(f"v_add_u32 v{T+3}, v{T+3}, v{T+1}")
    a(f"v_bfe_u32 v{T+4}, v{L_}, 1, 1")
    a(f"v_and_b32 v{T+5}, 7, v{T+3}")
    a(f"v_xor_b32 v{T+5}, v{T+5}, v{T+4}")
    a(f"v_lshlrev_b32 v{T+5}, 4, v{T+5}")
    a(f"v_add_u32 v{T+3}, 2, v{T+3}")
    a(f"v_and_b32 v{T+3}, 7, v{T+3}")
    a(f"v_xor_b32 v{T+3}, v{T+3}, v{T+4}")
    a(f"v_lshlrev_b32 v{T+3}, 4, v{T+3}")
    D = A_SET
    for cg in range(4):
        a(f"v_xor_b32 v{T+6}, {cg*32}, v{T+5}\nv_add_u32 v{T+6}, v{T+6}, v{T+2}")
        a(f"v_xor_b32 v{T+7}, {cg*32}, v{T+3}\nv_add_u32 v{T+7}, v{T+7}, v{T+2}")
        a(f"ds_read_b64_tr_b16 {vr(D+4*cg,2)}, v{T+6}")
        a(f"ds_read_b64_tr_b16 {vr(D+4*cg+2,2)}, v{T+7} offset:512")
    a(f"v_and_b32 v{T+6}, 15, v{L_}\nv_lshlrev_b32 v{T+6}, 12, v{T+6}\nv_lshlrev_b32 v{T+7}, 4, v{T}\nv_add_u32 v{T+6}, v{T+6}, v{T+7}")
    a(f"s_add_u32 s56, s4, {WS_UT}\ns_addc_u32 s57, s5, 0\ns_mov_b32 s58, {UT_BYTES}\ns_mov_b32 s59, 0x20000")
    a(f"s_lshl_b32 s52, s52, 18\ns_lshl_b32 s53, s{S_MT}, 8\ns_add_u32 s52, s52, s53\ns_lshl_b32 s53, s{S_WAVE}, 6\ns_add_u32 s52, s52, s53")
    a("s_waitcnt lgkmcnt(0)")
    for cg in range(4):
        a(f"s_add_u32 s53, s52, {cg*16*4096}")
        a(f"buffer_store_dwordx4 {vr(D+4*cg,4)}, v{T+6}, s[56:59], s53 offen {HSTORE_FLAGS}")

S_HF = 64
S_NONCE = 65
def gen_k1(a, name, stamps=False, fused=False):
    NST[0] = 0
    FUSED[0] = fused
    L_ = V_LANE; T = V_T
    a(f".globl {name}\n.p2align 8\n.type {name},@function")
    a.label(name)
    a("s_cmp_ge_u32 s2, 256")
    a(f"s_cbranch_scc1 {name}_end")
    a(f"s_load_dwordx2 s[8:9], s[0:1], {KA_U}")
    a(f"s_load_dwordx4 s[64:67], s[0:1], {KA_WG}")
    a(f"s_load_dwordx2 s[4:5], s[0:1], {KA_WS}")
    if fused: a(f"s_load_dwordx2 s[6:7], s[0:1], {KA_DBG}")
    kg = kgen.KGen(a, 0, 62, S_FC, 63, 55, V_LANE, S_KG, "kmap_table")
    kg.sloads()
    stamp_init(a, stamps)
    stamp(a, stamps)
    if fused: SKIP[0] = 1
    a(f"v_and_b32 v{V_LANE}, 63, v0")
    a(f"v_lshrrev_b32 v{V_T}, 6, v0")
    a("s_nop 0")
    a(f"v_readfirstlane_b32 s{S_WAVE}, v{V_T}")
    a("s_and_b32 s3, s2, 7")
    a("s_lshr_b32 s50, s2, 3")
    a("s_and_b32 s51, s3, 1\ns_lshl_b32 s51, s51, 3")
    a("s_and_b32 s52, s50, 7")
    a(f"s_add_u32 s{S_MT}, s51, s52")
    a("s_lshr_b32 s53, s50, 3")
    a("s_lshr_b32 s54, s3, 1")
    a("s_lshl_b32 s55, s54, 2\ns_add_u32 s55, s55, s53")
    a("s_and_b32 s56, s55, 1")
    a("s_mul_i32 s57, s55, 9\ns_add_u32 s57, s57, s56\ns_lshr_b32 s57, s57, 1")
    a(f"s_movk_i32 s59, 128\ns_cmp_eq_u32 s56, 0\ns_cselect_b32 s58, 4, -1\ns_cselect_b32 s{S_WJ}, s59, -512\ns_add_u32 s58, s57, s58")
    a(f"s_and_b32 s{S_FC}, s{S_WAVE}, 1\ns_lshr_b32 s{S_TR}, s{S_WAVE}, 1")
    a(f"s_xor_b32 s{S_HX}, s{S_FC}, s56\ns_lshl_b32 s{S_HX}, s{S_HX}, 6")
    a(f"s_lshl_b32 s59, s{S_MT}, 2\ns_lshl_b32 s60, s{S_TR}, 1\ns_add_u32 s59, s59, s60")
    a(f"s_mul_i32 s60, s59, 288\ns_lshl_b32 s61, s{S_FC}, 1\ns_add_u32 s60, s60, s61\ns_lshl_b32 s60, s60, 10\ns_lshl_b32 s61, s57, 12\ns_add_u32 s{S_HO0}, s60, s61")
    a(f"s_add_u32 s{S_HO1}, s{S_HO0}, {288*1024}")
    a(f"s_add_u32 s59, s59, s{S_FC}\ns_mul_i32 s59, s59, 288\ns_lshl_b32 s60, s58, 2\ns_add_u32 s59, s59, s60\ns_lshl_b32 s60, s56, 1\ns_add_u32 s59, s59, s60\ns_lshl_b32 s{S_HOH}, s59, 10")
    a(f"s_lshl_b32 s{S_M0W}, s{S_WAVE}, 12")
    a(f"s_lshl_b32 s58, s{S_MT}, 7\ns_lshl_b32 s59, s{S_WAVE}, 5\ns_add_u32 s58, s58, s59\ns_mul_i32 s{S_XB}, s58, 1152")
    a("s_lshl_b32 s58, s53, 1\ns_add_u32 s58, s58, s52\ns_cmp_eq_u32 s54, 2\ns_cselect_b32 s59, 2, 0\ns_add_u32 s58, s58, s59")
    a("s_cmp_ge_u32 s58, 9\ns_cselect_b32 s59, 9, 0\ns_sub_u32 s58, s58, s59")
    a("s_mov_b32 s61, s58")
    a(f"s_mul_i32 s60, s{S_FC}, 294912")
    for j in range(9):
        a(f"s_mul_i32 s59, s58, 589824\ns_add_u32 s{S_WC+j}, s59, s60")
        a(f"s_lshl_b32 s59, s58, 7\ns_add_u32 s{S_XC+j}, s59, s{S_XB}")
        if j < 8:
            a("s_add_u32 s58, s58, 1\ns_cmp_eq_u32 s58, 9\ns_cselect_b32 s58, 0, s58")
    a(f"s_lshl_b32 s62, s2, 1\ns_add_u32 s62, s62, s{S_TR}")
    a(f"s_lshl_b32 s63, s{S_WAVE}, 14\ns_cmp_ge_u32 s{S_WAVE}, 2\ns_cselect_b32 s59, {6*16384}, 0\ns_add_u32 s63, s63, s59")
    a("s_xor_b32 s55, s63, 16384")
    a("s_movk_i32 s60, 9216")
    a(f"v_lshrrev_b32 v{T+4}, 3, v{L_}")
    a(f"v_mul_lo_u32 v{V_WO}, v{T+4}, s60")
    a(f"v_lshrrev_b32 v{T+5}, 4, v{L_}")
    a(f"v_and_b32 v{T+6}, 1, v{T+5}")
    a(f"v_lshlrev_b32 v{T+6}, 2, v{T+6}")
    a(f"v_and_b32 v{T+7}, 7, v{L_}")
    a(f"v_xor_b32 v{T+6}, v{T+6}, v{T+7}")
    a(f"v_lshlrev_b32 v{T+6}, 4, v{T+6}")
    a(f"v_add_u32 v{V_WO}, v{V_WO}, v{T+6}")
    for i in range(1, 4):
        a(f"v_add_u32 v{V_WO+i}, {i*(73728-1024)}, v{V_WO}")
    a(f"v_mul_u32_u24 v{T+8}, 1152, v{T+4}")
    a(f"v_xor_b32 v{T+6}, v{T+7}, v{T+5}")
    a(f"v_lshlrev_b32 v{T+6}, 4, v{T+6}")
    a(f"v_add_u32 v{V_XO}, v{T+8}, v{T+6}")
    a(f"v_xor_b32 v{T+6}, 64, v{T+6}")
    a(f"v_add_u32 v{V_XO+1}, v{T+8}, v{T+6}")
    a(f"v_add_u32 v{V_XO+1}, {9216-1024}, v{V_XO+1}")
    a(f"v_add_u32 v{V_XO+2}, {2*(9216-1024)}, v{V_XO}")
    a(f"v_add_u32 v{V_XO+3}, {2*(9216-1024)}, v{V_XO+1}")
    a("s_waitcnt lgkmcnt(0)")
    stamp(a, stamps)
    a(f"s_mov_b32 s10, {X_BYTES}\ns_mov_b32 s11, 0x20000")
    a(f"s_cmp_lt_u32 s{S_WAVE}, 2")
    a("s_cselect_b32 s12, s64, s66\ns_cselect_b32 s13, s65, s67")
    a("s_lshl_b32 s58, s57, 7")
    a("s_add_u32 s12, s12, s58\ns_addc_u32 s13, s13, 0")
    a(f"s_sub_u32 s14, {W_BYTES}, s58\ns_mov_b32 s15, 0x20000")
    if fused and "nocodepf" not in OPT:
        lab = a.newlabel("cpf")
        a("s_getpc_b64 s[58:59]")
        a.label(lab)
        a(f"s_sub_u32 s58, s58, {lab}-{name}\ns_subb_u32 s59, s59, 0")
        a(f"s_lshr_b32 s60, s2, 3\ns_lshl_b32 s60, s60, 2\ns_add_u32 s60, s60, s{S_WAVE}\ns_mul_i32 s60, s60, 5")
        a(f"v_add_u32 v{T+10}, s60, v{L_}\nv_lshlrev_b32 v{T+10}, 7, v{T+10}")
        a(f"s_mov_b32 s60, kmap_table-{name}+4096")
        a(f"v_min_u32 v{T+10}, s60, v{T+10}")
        a(f"s_mov_b64 exec, 31\nglobal_load_dword v{T+11}, v{T+10}, s[58:59]\ns_mov_b64 exec, -1")
    kg.issue_params(pb=0)
    if fused:
        a(f"s_lshl_b32 s{S_HF}, s{S_MT}, 2\ns_add_u32 s{S_HF}, s{S_HF}, s54\ns_lshl_b32 s{S_HF}, s{S_HF}, 2\ns_add_u32 s{S_HF}, s{S_HF}, s53\ns_lshl_b32 s{S_HF}, s{S_HF}, 2")
        a(f"s_or_b32 s58, s2, s{S_WAVE}\ns_cmp_eq_u32 s58, 0")
        a(f"s_cbranch_scc0 {name}_nononce")
        a("s_memrealtime s[58:59]")
        a("s_waitcnt lgkmcnt(0)")
        a("s_lshl_b32 s58, s58, 1\ns_or_b32 s58, s58, 1")
        a("s_mov_b32 s56, s6\ns_mov_b32 s57, s7\ns_mov_b32 s59, 0x20000\nv_mov_b32 v190, s58\ns_mov_b32 s58, 256\nv_mov_b32 v191, 0")
        a("s_mov_b64 exec, 1\nbuffer_store_dword v190, v191, s[56:59], 0 offen sc0 sc1\ns_mov_b64 exec, -1")
        a.label(f"{name}_nononce")
    emit = Emit(a)
    for c in range(1):
        for i in range(4): emit(dma_x(c, XI[c], i, f"x{c}"))
        for i in range(4): emit(dma_w(c, SG[c], i, f"w{c}"))
    stamp(a, stamps)
    def grp_of(c):
        g = []
        for i in range(4):
            it = dma_x(c, XI[c], i, f"x{c}")[0]
            g.append(([f"s_add_u32 m0, s{S_M0W}, {XI[c]*16384}", "s_nop 0"] if i == 0 else []) + [it[0][1]])
        for i in range(4):
            it = dma_w(c, SG[c], i, f"w{c}")[0]
            g.append(([f"s_add_u32 m0, s{S_M0W}, {SG[c]*16384}", "s_nop 0"] if i == 0 else []) + [it[0][1]])
        return g
    for c in (1, 2):
        for i in range(4): a.vm_issue(f"x{c}")
        for i in range(4): a.vm_issue(f"w{c}")
    if "kgA" in OPT:
        kg.compute(wait_params=8, wait_map=8, pb=0, pre=(), extra=(), post=grp_of(1) + kg.map_groups() + grp_of(2), st=(lambda: stamp(a, stamps and NST[0] < 6)))
    elif "kgB" in OPT:
        for g in grp_of(1):
            for x in g: a(x)
        kg.compute(wait_params=16, wait_map=8, pb=0, pre=(), extra=kg.map_groups(), post=grp_of(2), st=(lambda: stamp(a, stamps and NST[0] < 6)))
    else:
        kg.compute(wait_params=8, wait_map=8, pb=0, pre=grp_of(1), extra=kg.map_groups(), post=grp_of(2), st=(lambda: stamp(a, stamps and NST[0] < 6)))
    if fused:
        SKIP[0] = 0; NST[0] = 1
    else:
        NST[0] = 6
    stamp_init2(a, stamps)
    stamp(a, stamps)
    if fused:
        a("s_mov_b32 s56, s6\ns_mov_b32 s57, s7\ns_mov_b32 s58, 256\ns_mov_b32 s59, 0x20000")
        a(f"v_mov_b32 v{V_NV+1}, 0")
        a(f"buffer_load_dword v{V_NV}, v{V_NV+1}, s[56:59], 0 offen sc0 sc1")
    a(f"s_add_u32 s16, s4, {WS_H}\ns_addc_u32 s17, s5, 0" if WS_H else "s_mov_b32 s16, s4\ns_mov_b32 s17, s5")
    a(f"s_mov_b32 s18, {H_BYTES}\ns_mov_b32 s19, 0x20000")
    a(f"v_lshlrev_b32 v{V_HOFF}, 4, v{L_}")
    a(f"v_mov_b32 v{V_C2}, 0x{f2u(GELU_C2):08x}")
    a(f"v_mov_b32 v{V_C1}, 0x{f2u(GELU_C1):08x}")
    a(f"v_lshrrev_b32 v{T}, 5, v{L_}")
    a(f"v_lshlrev_b32 v{T}, 3, v{T}")
    a(f"v_bfe_u32 v{T+2}, v{L_}, 2, 2")
    a(f"v_add_u32 v{T}, v{T}, v{T+2}")
    a(f"v_lshlrev_b32 v{T}, 7, v{T}")
    a(f"v_bfe_u32 v{T+3}, v{L_}, 4, 1")
    a(f"v_lshlrev_b32 v{T+3}, 1, v{T+3}")
    a(f"v_bfe_u32 v{T+4}, v{L_}, 1, 1")
    a(f"v_add_u32 v{T+3}, v{T+3}, v{T+4}")
    a(f"s_lshl_b32 s58, s{S_FC}, 2")
    a(f"v_add_u32 v{T+3}, s58, v{T+3}")
    a(f"v_lshrrev_b32 v{T+2}, 1, v{T+2}")
    a(f"v_lshlrev_b32 v{T+2}, 2, v{T+2}")
    a(f"v_xor_b32 v{T+3}, v{T+3}, v{T+2}")
    a(f"v_lshlrev_b32 v{T+3}, 4, v{T+3}")
    a(f"v_add_u32 v{T}, v{T}, v{T+3}")
    a(f"v_and_b32 v{T+4}, 1, v{L_}")
    a(f"v_lshlrev_b32 v{T+4}, 3, v{T+4}")
    a(f"v_add_u32 v{V_TR}, v{T}, v{T+4}")
    a(f"v_add_u32 v{V_TR+1}, 0x10000, v{V_TR}")
    a(f"v_add_u32 v{V_TR+2}, 0x20000, v{V_TR}")
    a(f"v_mov_b32 v{V_TRN}, v{V_TR}")
    a(f"v_and_b32 v{T}, 31, v{L_}")
    a(f"v_bfe_u32 v{T+1}, v{L_}, 1, 3")
    a(f"v_lshrrev_b32 v{T+2}, 5, v{L_}")
    a(f"v_xor_b32 v{T+1}, v{T+1}, v{T+2}")
    a(f"v_lshlrev_b32 v{T+1}, 4, v{T+1}")
    a(f"s_lshl_b32 s58, s{S_TR}, 6")
    a(f"v_add_u32 v{T}, s58, v{T}")
    a(f"v_lshlrev_b32 v{T}, 7, v{T}")
    a(f"v_add_u32 v{T}, v{T}, v{T+1}")
    for sp in range(4):
        a(f"v_xor_b32 v{V_XR+sp}, {sp<<5}, v{T}")
        a(f"v_add_u32 v{V_XR+4+sp}, 0x10000, v{V_XR+sp}")
        a(f"v_add_u32 v{V_XR+8+sp}, 0x20000, v{V_XR+sp}")
    a.wait(vm=lambda t: t in ("x0", "w0", "x1", "w1"), lg0=True)
    a("s_barrier")
    stamp(a, stamps)
    a("s_cmp_eq_u32 s54, 3")
    a(f"s_cbranch_scc1 {name}_nout")
    a("s_cmp_eq_u32 s54, 2\ns_cselect_b32 s50, 1, 0\ns_cmp_eq_u32 s53, 3\ns_cselect_b32 s51, 0, s50\ns_cmp_eq_u32 s51, 1")
    a(f"s_cbranch_scc1 {name}_nout")
    a(f"s_cmp_eq_u32 s54, 1\ns_cselect_b32 s50, 1, 0")
    a(f"s_lshl_b32 s51, s50, 15\ns_add_u32 s51, s51, {XI[0]*16384}")
    a("s_add_u32 s52, s61, s50\ns_cmp_eq_u32 s52, 9\ns_cselect_b32 s52, 0, s52")
    ut_code(a, name)
    a.label(f"{name}_nout")
    for s in range(2):
        for k in range(4): a(wread(s, k, SG[0])); a.lg_issue(f"r{s}")
        for tt in range(2): a(xread(s, tt)); a.lg_issue(f"r{s}")
    unit(a, "first", stamps=stamps)
    if fused:
        lab = a.newlabel(name + "_np"); ok = a.newlabel(name + "_nok")
        a("s_mov_b32 s60, 0x40000")
        a.label(lab)
        a(f"v_readfirstlane_b32 s{S_NONCE}, v{V_NV}")
        a("s_nop 3")
        a(f"s_cmp_lg_u32 s{S_NONCE}, 0")
        a(f"s_cbranch_scc1 {ok}")
        a("s_sleep 2")
        a("s_mov_b32 s56, s6\ns_mov_b32 s57, s7\ns_mov_b32 s58, 256\ns_mov_b32 s59, 0x20000")
        a(f"buffer_load_dword v{V_NV}, v{V_NV+1}, s[56:59], 0 offen sc0 sc1")
        a("s_waitcnt vmcnt(0)")
        a("s_sub_u32 s60, s60, 1\ns_cmp_lg_u32 s60, 0")
        a(f"s_cbranch_scc1 {lab}")
        a.label(ok)
        nf = a.newlabel(name + "_nsf")
        a(f"s_cmp_eq_u32 s{S_WAVE}, 0")
        a(f"s_cbranch_scc0 {nf}")
        a(f"s_add_u32 s56, s4, {WS_FLAG}\ns_addc_u32 s57, s5, 0\ns_mov_b32 s58, {FLAG_BYTES}\ns_mov_b32 s59, 0x20000")
        a(f"s_lshl_b32 s60, s2, 2\ns_add_u32 s60, s60, {FL_S}\nv_mov_b32 v{V_T}, s{S_NONCE}")
        a(f"s_mov_b64 exec, 1\nbuffer_store_dword v{V_T}, v{V_NV+1}, s[56:59], s60 offen sc0 sc1\ns_mov_b64 exec, -1")
        a.label(nf)
    a(f"s_mov_b32 s{S_CNT}, 3")
    sv_vm, sv_lg = list(a.vm), list(a.lg)
    a.mute = True
    a.waits = []; unit(a, "loop"); w1 = list(a.waits)
    a.waits = []; unit(a, "loop"); w2 = list(a.waits)
    a.waits = []; unit(a, "loop"); w3 = list(a.waits)
    assert w2 == w3
    a.mute = False
    ov = [min([v for v in (x, y) if v is not None], default=None) for x, y in zip(w1, w2)]
    a.vm, a.lg = sv_vm, sv_lg
    a(".p2align 6")
    a.label(f"{name}_loop")
    a(f"s_cmp_eq_u32 s{S_CNT}, 1\ns_cselect_b32 s50, s{S_HX}, 0\nv_xor_b32 v{V_TRN}, s50, v{V_TR}")
    unit(a, "loop", override=list(ov))
    a(f"s_add_u32 s{S_HO0}, s{S_HO0}, 4096")
    a(f"s_add_u32 s{S_HO1}, s{S_HO1}, 4096")
    a(f"s_sub_u32 s{S_CNT}, s{S_CNT}, 1")
    a(f"s_cmp_lg_u32 s{S_CNT}, 0")
    a(f"s_cbranch_scc1 {name}_loop")
    stamp(a, stamps)
    if fused:
        a(f"s_add_u32 s56, s4, {WS_FLAG}\ns_addc_u32 s57, s5, 0\ns_mov_b32 s58, {FLAG_BYTES}\ns_mov_b32 s59, 0x20000\ns_movk_i32 s60, {FL_S}")
        a(f"buffer_load_dwordx4 v[196:199], v{V_HOFF}, s[56:59], s60 offen sc0 sc1"); a.vm_issue("sf")
        a("s_lshr_b32 s60, s2, 3\ns_and_b32 s60, s60, 7\ns_and_b32 s61, s3, 1\ns_lshl_b32 s61, s61, 3\ns_add_u32 s61, s61, s60")
        a("s_lshl_b32 s61, s61, 2\ns_lshr_b32 s60, s3, 1\ns_add_u32 s61, s61, s60\ns_lshl_b32 s61, s61, 4")
    for w in range(3): a(f"v_xor_b32 v{V_TR+w}, s{S_HX}, v{V_TR+w}")
    a(f"s_cmp_eq_u32 s{S_FC}, 1")
    a(f"s_cbranch_scc1 {name}_half1")
    sv_vm, sv_lg = list(a.vm), list(a.lg)
    unit(a, "half", fc=0)
    a(f"s_branch {name}_halfdone")
    a.label(f"{name}_half1")
    a.vm, a.lg = sv_vm, sv_lg
    unit(a, "half", fc=1)
    a.label(f"{name}_halfdone")
    stamp(a, stamps)
    if fused: return
    a("s_nop 7\ns_nop 7")
    for ins, cost, vt, lt in gelu_half():
        a(ins)
    a.wait_all()
    stamp(a, stamps)
    if stamps: stamp_store2(a, 0)
    a.label(f"{name}_end")
    a("s_endpgm")
```
